```python
import torch

def _softmax(x, axis=-1):
    return torch.softmax(x, dim=axis)
def _gelu(x):
    return torch.nn.functional.gelu(x, approximate="tanh")
def _silu(x):
    return torch.nn.functional.silu(x)
def _sigmoid(x):
    return torch.sigmoid(x)
def _layernorm(x, axis=-1, eps=1e-5):
    m = x.mean(dim=axis, keepdim=True)
    v = x.var(dim=axis, keepdim=True, unbiased=False)
    return (x - m) / torch.sqrt(v + eps)
def _scatter_add(tgt, idx, src, axis=0):
    return tgt.clone().index_add_(axis, idx, src)
def _segment_sum(src, seg, n):
    out = torch.zeros((n,) + src.shape[1:], dtype=src.dtype)
    return out.index_add_(0, seg, src)
def _pad(x, pw):
    flat = tuple(v for pair in reversed(pw) for v in pair)
    return torch.nn.functional.pad(x, flat)

kernel_name = 'gated_mix__ssm_conv_s5__dense_activation_relu__prompt'

def setup_inputs():

    _w = (lambda a: (lambda t: t.to(torch.bfloat16) if t.is_floating_point() else t)(torch.as_tensor(a)))
    def _A_setup():
        B, S, D = 1, 2048, 1024
        P = D
        Lambda_re = -0.5 * (lambda _x: torch.exp(torch.as_tensor(_x)))((lambda *s: torch.randn(*s, dtype=torch.bfloat16) * 0.8)(P))
        Lambda_im = (lambda *s: torch.randn(*s, dtype=torch.bfloat16) * 0.8)(P) * 1.0
        B_re = (lambda *s: torch.randn(*s, dtype=torch.bfloat16) * 0.8)(P, D) * (D ** -0.5)
        B_im = (lambda *s: torch.randn(*s, dtype=torch.bfloat16) * 0.8)(P, D) * (D ** -0.5)
        C_re = (lambda *s: torch.randn(*s, dtype=torch.bfloat16) * 0.8)(D, P) * (P ** -0.5)
        C_im = (lambda *s: torch.randn(*s, dtype=torch.bfloat16) * 0.8)(D, P) * (P ** -0.5)
        log_dt = (lambda *s: torch.randn(*s, dtype=torch.bfloat16) * 0.8)(P) * 0.3 - 2.0
        Dskip = (lambda *s: torch.randn(*s, dtype=torch.bfloat16) * 0.8)(D)
        return {
            "x": _w((lambda *s: torch.randn(*s, dtype=torch.bfloat16) * 0.05)(B, S, D)),
            "Lambda_re": _w(Lambda_re),
            "Lambda_im": _w(Lambda_im),
            "B_re": _w(B_re),
            "B_im": _w(B_im),
            "C_re": _w(C_re),
            "C_im": _w(C_im),
            "log_dt": _w(log_dt),
            "Dskip": _w(Dskip),
        }
    _A_in = _A_setup()

    def _B_setup():
        B, S, D, Dff = 1, 2048, 1024, 3584
        return {
            "x": _w((lambda *s: torch.randn(*s, dtype=torch.bfloat16) * 0.05)(B, S, D)),
            "w1": _w((lambda *s: torch.randn(*s, dtype=torch.bfloat16) * 0.05)(D, Dff)),
            "w2": _w((lambda *s: torch.randn(*s, dtype=torch.bfloat16) * 0.05)(Dff, D)),
        }
    _B_in = _B_setup()

    return {
        "A_x": _A_in["x"],
        "A_Lambda_re": _A_in["Lambda_re"],
        "A_Lambda_im": _A_in["Lambda_im"],
        "A_B_re": _A_in["B_re"],
        "A_B_im": _A_in["B_im"],
        "A_C_re": _A_in["C_re"],
        "A_C_im": _A_in["C_im"],
        "A_log_dt": _A_in["log_dt"],
        "A_Dskip": _A_in["Dskip"],
        "B_x": _B_in["x"],
        "B_w1": _B_in["w1"],
        "B_w2": _B_in["w2"],
        "gate_w": _w((lambda *s: torch.randn(*s, dtype=torch.bfloat16) * 0.05)(1024) * 16.0),
    }

def reference(A_x, A_Lambda_re, A_Lambda_im, A_B_re, A_B_im, A_C_re, A_C_im, A_log_dt, A_Dskip, B_x, B_w1, B_w2, gate_w):
    def _A_ref(x, Lambda_re, Lambda_im, B_re, B_im, C_re, C_im, log_dt, Dskip):
        Bsz, L, H = x.shape
        Lam = Lambda_re + 1j * Lambda_im
        Bmat = B_re + 1j * B_im
        Cmat = C_re + 1j * C_im
        dt = torch.exp(log_dt)
        Lam_bar = torch.exp(dt * Lam)
        B_bar = ((Lam_bar - 1.0) / Lam)[:, None] * Bmat
        Bu = torch.einsum("bld,pd->blp", x + 0j, B_bar)
        h = torch.zeros_like(Bu[:, 0, :])
        hs = []
        for t in range(L):
            h = Lam_bar[None, :] * h + Bu[:, t, :]
            hs.append(h)
        hseq = torch.stack(hs, 1)
        y = 2.0 * torch.einsum("blp,dp->bld", hseq, Cmat).real + x * Dskip[None, None, :]
        return y

    def _B_ref(x, w1, w2):
        h = torch.einsum("bsd,df->bsf", x, w1)
        zero = torch.zeros_like(h)
        h = torch.maximum(h, zero)
        return torch.einsum("bsf,fd->bsd", h, w2)

    x = A_x
    g = _sigmoid((x * gate_w).sum(-1, keepdims=True))
    a = _A_ref(x, A_Lambda_re, A_Lambda_im, A_B_re, A_B_im, A_C_re, A_C_im, A_log_dt, A_Dskip)
    b = _B_ref(x, B_w1, B_w2)
    return g * a + (1 - g) * b
```

```python
import re
TRANS = ('v_exp_f32','v_log_f32','v_rcp_f32','v_rsq_f32','v_sqrt_f32','v_sin_f32','v_cos_f32')
def regs_of(tok):
    tok = tok.strip()
    tok = re.sub(r'^-|^abs\(|\)$|^\|', '', tok)
    m = re.fullmatch(r'([vsa])\[(\d+):(\d+)\]', tok)
    if m: return {(m.group(1), k) for k in range(int(m.group(2)), int(m.group(3))+1)}
    m = re.fullmatch(r'([vsa])(\d+)', tok)
    if m: return {(m.group(1), int(m.group(2)))}
    if tok == 'vcc': return {('s', 106), ('s', 107)}
    if tok == 'm0': return {('m', 0)}
    if tok == 'exec': return {('e', 0)}
    return set()
class Ins:
    def __init__(s, text):
        s.text = text
        t = text.split(';')[0].strip()
        p = t.split(None, 1)
        s.op = p[0]
        rest = p[1] if len(p) > 1 else ''
        ops = [o.strip() for o in rest.split(',')]
        if ops:
            ops[-1] = ops[-1].split()[0] if ops[-1] else ''
        s.mods = rest
        s.ops = ops
        op = s.op
        s.mfma = op.startswith('v_mfma')
        s.valu = op.startswith('v_') and not s.mfma
        s.trans = op in TRANS
        s.salu = op.startswith('s_')
        s.vmem = op.startswith('buffer_') or op.startswith('global_')
        s.ds = op.startswith('ds_')
        s.dpp = 'row_' in rest or 'quad_perm' in rest
        s.lds = s.vmem and rest.split()[-1] == 'lds'
        R = [regs_of(o) for o in ops]
        s.w = set(); s.r = set(); s.stdata = set(); s.rc = set()
        if s.mfma:
            s.w = R[0]; s.r = R[1] | R[2] | R[3]; s.rab = R[1] | R[2]; s.rc = R[3]
        elif s.valu:
            if op.startswith('v_cmp'):
                s.w = R[0]; s.r = set().union(*R[1:])
            elif op.startswith('v_permlane') and 'swap' in op:
                s.w = R[0] | R[1]; s.r = R[0] | R[1]
            else:
                s.w = R[0]; s.r = set().union(*R[1:]) if len(R) > 1 else set()
                if op.startswith(('v_fmac', 'v_dot2c', 'v_writelane')) or s.dpp: s.r |= R[0]
                if '_co_' in op: s.w |= R[1]
        elif s.salu:
            if op.startswith(('s_cmp', 's_cbranch', 's_branch', 's_waitcnt', 's_nop', 's_barrier', 's_endpgm', 's_setprio', 's_sleep')):
                s.r = set().union(*R) if R else set()
            else:
                s.w = R[0]; s.r = set().union(*R[1:]) if len(R) > 1 else set()
        elif s.vmem:
            if 'store' in op or 'atomic' in op:
                s.r = set().union(*R)
                if 'x4' in op or 'x3' in op: s.stdata = R[0]
            elif s.lds:
                s.r = set().union(*R) | {('m', 0)}
            elif op in ('buffer_wbl2', 'buffer_inv'):
                pass
            else:
                s.w = R[0]; s.r = set().union(*R[1:])
        elif s.ds:
            if 'write' in op: s.r = set().union(*R)
            else: s.w = R[0]; s.r = set().union(*R[1:])
        s.states = 1
        if op == 's_nop': s.states = int(ops[0]) + 1
def need(p, c):
    n = 0
    vw = {x for x in p.w if x[0] in 'va'}; sw = {x for x in p.w if x[0] == 's'}
    if p.valu:
        if c.mfma and vw & c.r: n = max(n, 2)
        if p.trans and c.valu and not c.trans and vw & c.r: n = max(n, 1)
        if p.trans and (c.vmem or c.ds) and vw & c.r: n = max(n, 1)
        if sw & c.r:
            if c.valu: n = max(n, 4 if 'lane' in c.op else 2)
            if c.vmem: n = max(n, 5)
            if c.salu: n = max(n, 1)
        if vw & c.r:
            if c.op.startswith(('v_readlane', 'v_readfirstlane')): n = max(n, 1)
            if c.dpp or c.op.startswith('v_permlane'): n = max(n, 2)
    if p.mfma:
        if (c.valu or c.vmem or c.ds) and vw & (c.r | c.w): n = max(n, 8)
        if c.mfma:
            if vw & c.rab: n = max(n, 8)
            if vw & c.rc and c.rc != vw: n = max(n, 6)
        if c.valu and p.rc & c.w: n = max(n, 3)
    if p.salu and ('m', 0) in p.w and c.lds: n = max(n, 1)
    if p.stdata & c.w: n = max(n, 2 if c.valu else 1)
    return n
class Asm:
    def __init__(s):
        s.lines = []; s.hist = []
    def raw(s, t):
        s.lines.append(t)
    def label(s, name):
        s.lines.append(name + ':'); s.hist = []
    def __call__(s, text):
        for t in text.strip().split('\n'):
            t = t.strip()
            if not t or t.startswith(';'): continue
            if t.endswith(':'):
                s.label(t[:-1]); continue
            c = Ins(t)
            d = 0; pad = 0
            for p in reversed(s.hist):
                pad = max(pad, need(p, c) - d)
                d += p.states
                if d > 12: break
            if pad > 0:
                nop = Ins('s_nop %d' % (pad - 1)); s.hist.append(nop); s.lines.append('    ' + nop.text)
            s.hist.append(c); s.hist = s.hist[-24:]
            s.lines.append('    ' + t)
    def text(s): return '\n'.join(s.lines) + '\n'
def interleave(mf, fill, start=0, every=1):
    out = []; k = 0
    for n, m in enumerate(mf):
        out.append(m)
        if n >= start and (n - start) % every == 0 and k < len(fill):
            out.append(fill[k]); k += 1
    out += fill[k:]
    return out
```

```python
from asmlib import *
A2_OFF = 0; A2_SIZE = 8*88*32768
G_OFF = 0x1600000; AGG_OFF = 0x1610000; X_OFF = 0x2000000
WS_SIZE = 268435456
LOG2E = 0x3fb8aa3b; INV2PI = 0x3e22f983
K1_STAGE = 55296; K1_DUMMY = 110592; K1_ESC = 112640; K1_LDS = 116736

def srd(a, d, lo, rec, off=0):
    if off:
        a(f's_add_u32 s{d}, s{lo}, {off}\ns_addc_u32 s{d+1}, s{lo+1}, 0')
    else:
        a(f's_mov_b32 s{d}, s{lo}\ns_mov_b32 s{d+1}, s{lo+1}')
    a(f's_mov_b32 s{d+2}, {rec}\ns_mov_b32 s{d+3}, 0x00020000')

def cpow(a, dr, di, a2, th, n, t0, t1):
    a(f'''v_mul_f32 v{t0}, {n}, v{a2}
v_mul_f32 v{t1}, {n}, v{th}
v_exp_f32 v{t0}, v{t0}
v_fract_f32 v{t1}, v{t1}
v_cos_f32 v{dr}, v{t1}
v_sin_f32 v{di}, v{t1}
v_mul_f32 v{dr}, v{dr}, v{t0}
v_mul_f32 v{di}, v{di}, v{t0}''')

def params(a, lre, lim, ldt, a2, th):
    a(f'''v_lshlrev_b32 v{lre}, 16, v{lre}
v_lshlrev_b32 v{lim}, 16, v{lim}
v_lshlrev_b32 v{ldt}, 16, v{ldt}
v_mul_f32 v{ldt}, {LOG2E}, v{ldt}
v_exp_f32 v{ldt}, v{ldt}
v_cvt_pk_bf16_f32 v{ldt}, v{ldt}, v{ldt}
v_lshlrev_b32 v{ldt}, 16, v{ldt}
v_mul_f32 v{a2}, v{ldt}, v{lre}
v_mul_f32 v{th}, v{ldt}, v{lim}
v_mul_f32 v{a2}, {LOG2E}, v{a2}
v_mul_f32 v{th}, {INV2PI}, v{th}''')

ACC = 64; SET = [160, 200]
def k1_frag(st, kind, n):
    base = SET[st] + (0 if kind == 'A' else 16) + 4*n
    return base
def k1_mfmas(st, c):
    nb = 6 if c == 0 else 5
    out = []
    for n in range(nb):
        for b in range(4):
            d = ACC + (n*4 + b)*4
            A = k1_frag(st, 'A', b); B = k1_frag(st, 'B', n)
            if n < 2: x, y = A, B
            else: x, y = B, A
            out.append(f'v_mfma_f32_16x16x32_bf16 v[{d}:{d+3}], v[{x}:{x+3}], v[{y}:{y+3}], v[{d}:{d+3}]')
    return out
def k1_reads(st, c, slot, sub):
    so = slot*K1_STAGE
    out = []
    def rdA(b):
        f = k1_frag(st, 'A', b); return f'ds_read_b128 v[{f}:{f+3}], v{8+sub} offset:{so + b*2048}'
    def rdB(n):
        f = k1_frag(st, 'B', n); return f'ds_read_b128 v[{f}:{f+3}], v{10+sub} offset:{so + n*2048}'
    def rdW(n, h):
        f = k1_frag(st, 'B', 2+n) + 2*h
        if c == 1 and n == 2: reg, blk = 13, 0
        else: reg, blk = 12, n
        return f'ds_read_b64_tr_b16 v[{f}:{f+1}], v{reg} offset:{so + sub*7168 + h*1792 + blk*32}'
    out = [rdA(0), rdB(0), rdA(1), rdA(2), rdA(3), rdB(1)]
    for n in range(4 if c == 0 else 3):
        out += [rdW(n, 0), rdW(n, 1)]
    return out
def k1_dma(slot):
    so = slot*K1_STAGE
    out = []
    for p in range(4):
        out.append(f's_add_u32 m0, s73, {so + 1024*p}\ns_nop 0\nbuffer_load_dwordx4 v{1+p}, s[4:7], s70 offen lds')
    out.append(f's_add_u32 m0, s74, {so}\ns_nop 0\nbuffer_load_dwordx4 v5, s[8:11], s70 offen lds')
    out.append(f's_add_u32 m0, s75, {so}\ns_nop 0\nbuffer_load_dwordx4 v6, s[12:15], s71 offen lds')
    out.append(f's_mov_b32 m0, s{76+slot}\ns_add_u32 s70, s70, 128\nbuffer_load_dwordx4 v7, s[12:15], s71 offen lds\ns_add_u32 s71, s71, 458752')
    return out
def k1_step(a, c, slot, dma, last):
    a('s_waitcnt lgkmcnt(0)')
    for t in interleave(k1_mfmas(0, c), k1_reads(1, c, slot, 1), 0, 1): a(t)
    if not last:
        a('s_waitcnt vmcnt(0) lgkmcnt(0)\ns_barrier')
    else:
        a('s_waitcnt lgkmcnt(0)')
    fill = [] if last else k1_reads(0, c, slot ^ 1, 0)
    if dma: fill = fill + k1_dma(slot)
    for t in interleave(k1_mfmas(1, c), fill, 0, 1): a(t)

def gen_k1(a):
    a.label('k1_kernel')
    a(f'''s_cmp_ge_u32 s2, 256
s_cbranch_scc1 k1_end
s_load_dwordx16 s[32:47], s[0:1], 0
s_load_dwordx16 s[48:63], s[0:1], 64
v_lshrrev_b32 v1, 6, v0
v_and_b32 v0, 63, v0
v_readfirstlane_b32 s64, v1
s_and_b32 s78, s2, 7
s_lshr_b32 s79, s2, 3
s_and_b32 s67, s78, 1
s_lshl_b32 s67, s67, 2
s_and_b32 s80, s79, 3
s_add_u32 s67, s67, s80
s_lshr_b32 s68, s78, 1
s_lshl_b32 s68, s68, 3
s_lshr_b32 s80, s79, 2
s_add_u32 s68, s68, s80
s_and_b32 s65, s64, 3
s_lshr_b32 s66, s64, 2
v_lshrrev_b32 v30, 3, v0
v_and_b32 v31, 7, v0
v_and_b32 v32, 15, v0
v_lshrrev_b32 v33, 4, v0
s_lshr_b32 s80, s64, 1
s_lshl_b32 s80, s80, 6
s_and_b32 s81, s64, 1
s_lshl_b32 s82, s81, 3
s_add_u32 s80, s80, s82
s_lshl_b32 s82, s67, 8
s_add_u32 s80, s80, s82
v_lshrrev_b32 v34, 2, v30
v_lshlrev_b32 v34, 4, v34
v_and_b32 v35, 3, v30
v_add3_u32 v34, v34, v35, s80
v_lshlrev_b32 v34, 11, v34
v_lshrrev_b32 v35, 1, v30
v_xor_b32 v35, v35, v31
v_lshl_add_u32 v1, v35, 4, v34
v_xor_b32 v2, 64, v1
v_add_u32 v2, 0x10000, v2
v_add_u32 v3, 0x2000, v1
v_add_u32 v4, 0x2000, v2
s_lshl_b32 s80, s68, 5
s_lshl_b32 s82, s66, 4
s_add_u32 s83, s80, s82
s_lshl_b32 s82, s81, 3
s_add_u32 s82, s82, s83
v_add_u32 v34, s82, v30
v_lshlrev_b32 v34, 11, v34
s_lshl_b32 s82, s81, 2
v_xor_b32 v35, s82, v35
v_lshl_add_u32 v5, v35, 4, v34
; w1 pieces
s_mul_i32 s84, s68, 224
s_lshl_b32 s82, s64, 6
s_movk_i32 s85, 4682
s_movk_i32 s86, 7168''')
    for p in range(2):
        a(f'''v_add_u32 v34, s82, v0
v_mul_lo_u32 v35, v34, s85
v_lshrrev_b32 v35, 16, v35
v_mul_u32_u24 v36, 14, v35
v_sub_u32 v36, v34, v36
v_and_b32 v37, 0x33, v35
v_and_b32 v38, 4, v35
v_lshl_or_b32 v37, v38, 1, v37
v_and_b32 v38, 8, v35
v_lshrrev_b32 v38, 1, v38
v_or_b32 v37, v37, v38
v_mul_lo_u32 v37, v37, s86
v_lshl_add_u32 v37, v36, 4, v37
v_add_u32 v{6+p}, s84, v37
s_add_u32 s82, s82, 512''')
    a(f'''v_mov_b32 v35, 0x80000000
v_cmp_lt_u32 vcc, 895, v34
v_cndmask_b32 v7, v7, v35, vcc
s_lshl_b32 s73, s64, 12
s_lshl_b32 s82, s64, 10
s_add_u32 s74, s82, 32768
s_add_u32 s75, s82, 40960
s_add_u32 s76, s82, 49152
s_add_u32 s77, s76, {K1_STAGE}
s_sub_u32 s82, s82, 6144
s_add_u32 s82, s82, {K1_DUMMY}
s_cmp_ge_u32 s64, 6
s_cselect_b32 s76, s82, s76
s_cselect_b32 s77, s82, s77
s_mov_b32 s70, 0
s_mov_b32 s71, 0
s_waitcnt lgkmcnt(0)''')
    srd(a, 4, 32, 4194304)
    a('''s_bitcmp1_b32 s64, 1
s_cselect_b64 s[8:9], s[40:41], s[38:39]
s_mov_b32 s10, 2097152
s_mov_b32 s11, 0x00020000''')
    srd(a, 12, 52, 7340032)
    srd(a, 16, 62, WS_SIZE)
    srd(a, 20, 56, 2048)
    a(f'''s_lshl_b32 s80, s2, 3
s_add_u32 s87, s80, s64
s_lshl_b32 s80, s87, 11
v_lshlrev_b32 v36, 5, v0
buffer_load_dwordx4 v[160:163], v36, s[4:7], s80 offen
buffer_load_dwordx4 v[164:167], v36, s[4:7], s80 offen offset:16
buffer_load_dwordx4 v[168:171], v36, s[20:23], 0 offen
buffer_load_dwordx4 v[172:175], v36, s[20:23], 0 offen offset:16
v_add_u32 v37, s83, v32
v_lshlrev_b32 v37, 1, v37
v_and_b32 v38, 31, v0
s_lshl_b32 s80, s68, 5
v_add_u32 v38, s80, v38
v_lshlrev_b32 v38, 1, v38''')
    for k, (lo, d) in enumerate([(34, 176), (36, 177), (46, 178)]):
        srd(a, 24, lo, 2048)
        a(f'buffer_load_ushort v{d}, v37, s[24:27], 0 offen\nbuffer_load_ushort v{d+3}, v38, s[24:27], 0 offen\ns_nop 0')
    for t in k1_dma(0): a(t)
    for t in k1_dma(1): a(t)
    a(f'''v_lshrrev_b32 v34, 1, v32
v_xor_b32 v34, v34, v33
v_lshlrev_b32 v34, 4, v34
v_lshl_add_u32 v34, v32, 7, v34
s_lshl_b32 s80, s65, 13
v_add_u32 v8, s80, v34
v_xor_b32 v9, 64, v8
s_lshl_b32 s80, s66, 12
s_add_u32 s80, s80, 32768
v_add_u32 v10, s80, v34
v_xor_b32 v11, 64, v10
v_lshrrev_b32 v34, 1, v33
v_lshlrev_b32 v34, 4, v34
v_and_b32 v35, 1, v33
v_lshl_add_u32 v34, v35, 2, v34
v_bfe_u32 v35, v0, 2, 2
v_add_u32 v34, v34, v35
v_mul_u32_u24 v34, 224, v34
v_and_b32 v35, 3, v0
v_lshl_add_u32 v34, v35, 3, v34
s_and_b32 s88, s68, 1
s_cmp_eq_u32 s88, 1
s_cselect_b32 s89, 48, 0
s_cselect_b32 s90, 16, 64
s_cselect_b32 s91, 0, 96
s_cmp_eq_u32 s66, 0
s_cselect_b32 s89, s89, s90
s_lshl_b32 s80, s89, 1
s_add_u32 s80, s80, 40960
v_add_u32 v12, s80, v34
s_lshl_b32 s80, s91, 1
s_add_u32 s80, s80, 40960
v_add_u32 v13, s80, v34
s_lshl_b32 s80, s65, 2
v_add_u32 v26, s80, v33''')
    for k in range(96): a(f'v_mov_b32 v{ACC+k}, 0')
    a('s_waitcnt vmcnt(14)')
    a('v_mov_b32 v40, 0\nv_mov_b32 v41, 0')
    for k in range(8):
        x = 160+k; g = 168+k
        a(f'''v_lshlrev_b32 v42, 16, v{x}
v_and_b32 v43, 0xffff0000, v{x}
v_lshlrev_b32 v44, 16, v{g}
v_and_b32 v45, 0xffff0000, v{g}
v_mul_f32 v42, v42, v44
v_mul_f32 v43, v43, v45
v_cvt_pk_bf16_f32 v42, v42, v43
v_lshlrev_b32 v43, 16, v42
v_and_b32 v42, 0xffff0000, v42
v_add_f32 v40, v40, v43
v_add_f32 v41, v41, v42''')
    a('v_add_f32 v40, v40, v41')
    for m in ['row_shr:1 row_mask:0xf', 'row_shr:2 row_mask:0xf', 'row_shr:4 row_mask:0xf', 'row_shr:8 row_mask:0xf', 'row_bcast:15 row_mask:0xa', 'row_bcast:31 row_mask:0xc']:
        a(f'v_add_f32_dpp v40, v40, v40 {m} bank_mask:0xf')
    a(f'''v_readlane_b32 s80, v40, 63
v_mov_b32 v40, s80
v_cvt_pk_bf16_f32 v40, v40, v40
v_lshlrev_b32 v40, 16, v40
v_mul_f32 v40, {LOG2E | 0x80000000}, v40
v_exp_f32 v40, v40
v_add_f32 v40, 1.0, v40
v_rcp_f32 v40, v40
v_cvt_pk_bf16_f32 v40, v40, v40
v_lshlrev_b32 v40, 16, v40
s_lshl_b32 s80, s87, 2
s_add_u32 s80, s80, {G_OFF}
v_mov_b32 v41, 0
s_mov_b64 exec, 1
buffer_store_dword v40, v41, s[16:19], s80 offen
s_mov_b64 exec, -1''')
    params(a, 176, 177, 178, 42, 43)
    params(a, 179, 180, 181, 44, 45)
    cpow(a, 14, 15, 42, 43, '1.0', 46, 47)
    a('s_mov_b32 s80, 0x41800000\ns_mov_b32 s81, 0x43800000\nv_cvt_f32_u32 v48, v26\nv_mul_f32 v48, s80, v48')
    cpow(a, 16, 17, 42, 43, 's80', 46, 47)
    cpow(a, 18, 19, 42, 43, 's81', 46, 47)
    cpow(a, 20, 21, 42, 43, 'v48', 46, 47)
    cpow(a, 24, 25, 44, 45, 's80', 46, 47)
    a('''v_mul_f32 v46, v176, v176
v_fmac_f32 v46, v177, v177
v_rcp_f32 v46, v46
v_add_f32 v47, -1.0, v14
v_mul_f32 v22, v47, v176
v_fmac_f32 v22, v15, v177
v_mul_f32 v23, v15, v176
v_fma_f32 v23, -v47, v177, v23
v_add_f32 v46, v46, v46
v_mul_f32 v22, v22, v46
v_mul_f32 v23, v23, v46
s_waitcnt vmcnt(8)
s_barrier
s_mov_b32 s69, 0
s_cmp_eq_u32 s66, 1
s_cbranch_scc1 k1_c1''')
    for c in range(2):
        if c == 1: a.label('k1_c1')
        for t in k1_reads(0, c, 0, 0): a(t)
        a.label(f'k1_loop{c}')
        k1_step(a, c, 0, True, False)
        k1_step(a, c, 1, True, False)
        a(f's_add_u32 s69, s69, 1\ns_cmp_lt_u32 s69, 7\ns_cbranch_scc1 k1_loop{c}')
        k1_step(a, c, 0, False, False)
        k1_step(a, c, 1, False, True)
        k1_epi(a, c)
    a.label('k1_end')
    a('s_endpgm')

def k1_epi(a, c):
    RE = lambda t: ACC + (t >> 2)*4 + (t & 3)
    IM = lambda t: ACC + 16 + (t >> 2)*4 + (t & 3)
    a('s_nop 7')
    for t in range(1, 16):
        a(f'''v_fmac_f32 v{RE(t)}, v14, v{RE(t-1)}
v_fmac_f32 v{IM(t)}, v14, v{IM(t-1)}
v_fma_f32 v{RE(t)}, -v15, v{IM(t-1)}, v{RE(t)}
v_fmac_f32 v{IM(t)}, v15, v{RE(t-1)}''')
    a(f'''v_and_b32 v32, 15, v0
v_lshlrev_b32 v34, 8, v26
v_lshl_add_u32 v34, v32, 3, v34
v_mov_b32 v36, v{RE(15)}
v_mov_b32 v37, v{IM(15)}
v_add_u32 v34, {K1_ESC + 128*c}, v34
ds_write_b64 v34, v[36:37]
s_waitcnt lgkmcnt(0)
s_barrier''')
    if c == 0:
        a(f'''s_cmp_lg_u32 s64, 0
s_cbranch_scc1 k1_nopub
v_and_b32 v35, 31, v0
v_lshlrev_b32 v35, 3, v35
v_add_u32 v38, {K1_ESC}, v35''')
        for s in range(16): a(f'ds_read_b64 v[{160+2*s}:{161+2*s}], v38 offset:{256*s}')
        srd(a, 20, 62, 65536, AGG_OFF)
        srd(a, 28, 60, 256)
        a('s_waitcnt lgkmcnt(0)')
        for s in range(1, 16):
            p = 160+2*(s-1); q = 160+2*s
            a(f'''v_fmac_f32 v{q}, v24, v{p}
v_fmac_f32 v{q+1}, v24, v{p+1}
v_fma_f32 v{q}, -v25, v{p+1}, v{q}
v_fmac_f32 v{q+1}, v25, v{p}''')
        a(f'''s_lshl_b32 s80, s67, 13
s_lshl_b32 s81, s68, 8
s_add_u32 s80, s80, s81
s_mov_b64 exec, 0xffffffff
buffer_store_dwordx2 v[190:191], v35, s[20:23], s80 offen sc0 sc1
s_mov_b64 exec, 1
s_lshl_b32 s80, s68, 3
s_add_u32 s80, s80, s67
v_mov_b32 v35, 0
v_mov_b32 v36, 1
s_waitcnt vmcnt(0)
buffer_store_byte v36, v35, s[28:31], s80 offen sc0 sc1
s_mov_b64 exec, -1''')
        a.label('k1_nopub')
    a(f'v_lshlrev_b32 v38, 3, v32\nv_add_u32 v38, {K1_ESC + 128*c}, v38')
    for s in range(15): a(f'ds_read_b64 v[{160+2*s}:{161+2*s}], v38 offset:{256*s}')
    nh = 4 if c == 0 else 3
    a(f'''s_mul_i32 s80, s68, 112
s_add_u32 s81, s80, s89
s_lshr_b32 s81, s81, 5
s_add_u32 s82, s80, s91
s_lshr_b32 s82, s82, 5
s_mul_i32 s83, s67, 88
s_add_u32 s83, s83, 32
s_lshl_b32 s83, s83, 15
s_lshl_b32 s84, s65, 13
s_add_u32 s83, s83, s84
v_lshlrev_b32 v39, 4, v0
v_add_u32 v40, 4096, v39
s_lshl_b32 s84, s88, 3
v_add_u32 v41, s84, v39
v_add_u32 v42, s84, v40''')
    def kfoff(src, dst):
        a(f's_lshr_b32 s85, s{src}, 1\ns_lshl_b32 s85, s85, 15\ns_and_b32 s86, s{src}, 1\ns_lshl_b32 s86, s86, 10\ns_add_u32 s85, s85, s86\ns_add_u32 s{dst}, s85, s83')
    groups = [(2, 3), (4, 5)] if c == 0 else [(2, 3), (4,)]
    tmp = 192
    for gi, grp in enumerate(groups):
        if len(grp) == 2:
            kfoff(81, 92)
            a('s_add_u32 s81, s81, 1')
        else:
            kfoff(82, 92)
        for b in range(4):
            t = tmp + 4*((gi*4 + b) % 8)
            for u, n in enumerate(grp):
                d = ACC + (n*4 + b)*4
                for e in range(4): a(f'v_max_f32 v{d+e}, 0, v{d+e}')
                a(f'v_cvt_pk_bf16_f32 v{t+2*u}, v{d}, v{d+1}\nv_cvt_pk_bf16_f32 v{t+2*u+1}, v{d+2}, v{d+3}')
            if len(grp) == 2:
                a(f'buffer_store_dwordx4 v[{t}:{t+3}], v{39 + (b >> 1)}, s[16:19], s92 offen offset:{2048*(b & 1)}')
            else:
                a(f'buffer_store_dwordx2 v[{t}:{t+1}], v{41 + (b >> 1)}, s[16:19], s92 offen offset:{2048*(b & 1)}')
    a('s_waitcnt lgkmcnt(0)\nv_mov_b32 v28, 0\nv_mov_b32 v29, 0')
    for s in range(15):
        q = 160+2*s; p = q-2
        if s > 0:
            a(f'''v_fmac_f32 v{q}, v16, v{p}
v_fmac_f32 v{q+1}, v16, v{p+1}
v_fma_f32 v{q}, -v17, v{p+1}, v{q}
v_fmac_f32 v{q+1}, v17, v{p}''')
        a(f'v_cmp_lt_u32 vcc, {s}, v26\nv_cndmask_b32 v28, v28, v{q}, vcc\nv_cndmask_b32 v29, v29, v{q+1}, vcc')
    for t in range(16):
        a(f'''v_mul_f32 v44, v22, v{RE(t)}
v_mul_f32 v45, v23, v{RE(t)}
v_fma_f32 v{RE(t)}, -v23, v{IM(t)}, v44
v_fma_f32 v{IM(t)}, -v22, v{IM(t)}, -v45''')
    a('v_mov_b32 v160, v14\nv_mov_b32 v161, v15')
    for t in range(1, 16):
        q = 160+2*t; p = q-2
        a(f'''v_mul_f32 v{q}, v14, v{p}
v_mul_f32 v{q+1}, v14, v{p+1}
v_fma_f32 v{q}, -v15, v{p+1}, v{q}
v_fmac_f32 v{q+1}, v15, v{p}''')
    srd(a, 20, 62, 65536, AGG_OFF)
    if c == 1:
        srd(a, 28, 60, 256)
        a(f'''s_cmp_lg_u32 s64, 4
s_cbranch_scc1 k1_nopoll
s_lshl_b32 s80, s67, 3
s_lshl_b64 s[84:85], 1, s80
s_sub_u32 s84, s84, 1
s_subb_u32 s85, s85, 0
s_and_b32 s84, s84, 0x01010101
s_and_b32 s85, s85, 0x01010101
s_lshl_b32 s80, s68, 3
v_mov_b32 v44, 0''')
        a.label('k1_poll')
        a(f'''buffer_load_dwordx2 v[46:47], v44, s[28:31], s80 offen sc0 sc1
s_waitcnt vmcnt(0)
v_readfirstlane_b32 s86, v46
v_readfirstlane_b32 s87, v47
s_and_b64 s[86:87], s[86:87], s[84:85]
s_cmp_eq_u64 s[86:87], s[84:85]
s_cbranch_scc1 k1_nopoll
s_sleep 1
s_branch k1_poll''')
        a.label('k1_nopoll')
    a(f'''s_barrier
s_sub_u32 s80, s67, 7
s_lshl_b32 s80, s80, 13
s_lshl_b32 s81, s68, 8
s_add_u32 s80, s80, s81
s_add_u32 s80, s80, {128*c}
v_lshlrev_b32 v44, 3, v32
v_add_u32 v44, s80, v44''')
    for u in range(7):
        a(f'buffer_load_dwordx2 v[{192+2*u}:{193+2*u}], v44, s[20:23], 0 offen sc0 sc1\nv_add_u32 v44, 0x2000, v44')
    a(f'''s_mul_i32 s83, s67, 88
s_and_b32 s84, s68, 30
s_add_u32 s83, s83, s84
s_lshl_b32 s83, s83, 15
s_lshl_b32 s84, s65, 13
s_add_u32 s83, s83, s84
s_lshl_b32 s84, s88, 10
s_add_u32 s83, s83, s84
s_add_u32 s84, s83, 32768
v_lshrrev_b32 v33, 4, v0
v_and_b32 v45, 1, v33
v_lshlrev_b32 v45, 2, v45
v_lshrrev_b32 v46, 1, v33
v_lshl_or_b32 v45, v46, 4, v45
v_add_u32 v46, {16*c}, v32
v_xor_b32 v45, v45, v46
v_lshl_add_u32 v45, v33, 5, v45
v_lshlrev_b32 v39, 3, v45
v_add_u32 v40, 4096, v39
s_waitcnt vmcnt(0)''')
    for u in range(1, 7):
        q = 192+2*u; p = q-2
        a(f'''v_fmac_f32 v{q}, v18, v{p}
v_fmac_f32 v{q+1}, v18, v{p+1}
v_fma_f32 v{q}, -v19, v{p+1}, v{q}
v_fmac_f32 v{q+1}, v19, v{p}''')
    a('''v_fmac_f32 v28, v20, v204
v_fmac_f32 v29, v20, v205
v_fma_f32 v28, -v21, v205, v28
v_fmac_f32 v29, v21, v204
v_mul_f32 v46, v22, v28
v_mul_f32 v47, v22, v29
v_fma_f32 v46, -v23, v29, v46
v_fmac_f32 v47, v23, v28''')
    for b in range(4):
        for e in range(4):
            t = 4*b + e; q = 160+2*t
            a(f'''v_fmac_f32 v{RE(t)}, v{q}, v46
v_fma_f32 v{IM(t)}, -v{q}, v47, v{IM(t)}
v_fma_f32 v{RE(t)}, -v{q+1}, v47, v{RE(t)}
v_fma_f32 v{IM(t)}, -v{q+1}, v46, v{IM(t)}''')
        t = 208 + 4*b
        a(f'''v_cvt_pk_bf16_f32 v{t}, v{RE(4*b)}, v{RE(4*b+1)}
v_cvt_pk_bf16_f32 v{t+1}, v{RE(4*b+2)}, v{RE(4*b+3)}
v_cvt_pk_bf16_f32 v{t+2}, v{IM(4*b)}, v{IM(4*b+1)}
v_cvt_pk_bf16_f32 v{t+3}, v{IM(4*b+2)}, v{IM(4*b+3)}
buffer_store_dwordx2 v[{t}:{t+1}], v{39 + (b >> 1)}, s[16:19], s83 offen offset:{2048*(b & 1)}
buffer_store_dwordx2 v[{t+2}:{t+3}], v{39 + (b >> 1)}, s[16:19], s84 offen offset:{2048*(b & 1)}''')
    a('s_endpgm')
```

```python
from asmlib import *
from k1 import srd, A2_SIZE, G_OFF, X_OFF, WS_SIZE
K2_STAGE = 49152; K2_LDS = 3*K2_STAGE
ACCA = 32; ACCB = 96; SET = [160, 192]
def frag(st, kind, n): return SET[st] + (0 if kind == 'A' else 16) + 4*n
def mfmas(st, ty):
    acc = ACCA if ty == 'a' else ACCB
    out = []
    for nb in range(4):
        for b in range(4):
            d = acc + (b*4 + nb)*4
            A = frag(st, 'A', b); B = frag(st, 'B', nb)
            out.append(f'v_mfma_f32_16x16x32_bf16 v[{d}:{d+3}], v[{B}:{B+3}], v[{A}:{A+3}], v[{d}:{d+3}]')
    return out
def reads(st, ty, kf):
    out = []
    if ty == 'a':
        def rA(b):
            f = frag(st, 'A', b)
            return [f'ds_read_b64_tr_b16 v[{f+2*h}:{f+2*h+1}], v{16+h} offset:{b*2048 + kf*1024}' for h in range(2)]
        def rB(n):
            f = frag(st, 'B', n); return [f'ds_read_b128 v[{f}:{f+3}], v{18+kf} offset:{n*2048}']
    else:
        def rA(b):
            f = frag(st, 'A', b); return [f'ds_read_b128 v[{f}:{f+3}], v16 offset:{b*2048 + kf*1024}']
        def rB(n):
            f = frag(st, 'B', n)
            return [f'ds_read_b64_tr_b16 v[{f+2*h}:{f+2*h+1}], v{17+n} offset:{(32*kf + 16*h)*256}' for h in range(2)]
    return rB(0) + rA(0) + rA(1) + rA(2) + rA(3) + rB(1) + rB(2) + rB(3)
def addr_update(ty, sreg):
    if ty == 'a': return [f'v_add_u32 v{16+k}, s{sreg}, v{7+k}' for k in range(4)]
    return [f'v_add_u32 v{16+k}, s{sreg}, v{11+k}' for k in range(5)]
uid = [0]
def dma_setup(generic):
    if generic:
        uid[0] += 1
        return [f'''s_bitcmp1_b32 s72, 0
s_cselect_b64 s[8:9], s[44:45], s[42:43]
s_lshr_b32 s80, s72, 1
s_lshl_b32 s80, s80, 7
s_sub_u32 s81, s72, 32
s_lshl_b32 s81, s81, 17''', f'''s_cmp_lt_u32 s72, 32
s_cselect_b64 s[8:9], s[8:9], s[54:55]
s_cselect_b32 s74, s80, s81
s_cselect_b32 s10, s82, s83
s_cmp_lt_u32 s72, s71
s_cselect_b32 s10, s10, 0
s_cselect_b32 s6, s6, 0''', f'''s_cmp_lg_u32 s72, 32
s_cbranch_scc1 k2_sk{uid[0]}
v_mov_b32 v3, v5
v_mov_b32 v4, v6
k2_sk{uid[0]}:''']
    return ['''s_sub_u32 s74, s72, 32
s_lshl_b32 s74, s74, 17
s_cmp_lt_u32 s72, s71
s_cselect_b32 s10, s10, 0
s_cselect_b32 s6, s6, 0''']
def dma(sslot):
    out = []
    for p in range(2):
        out.append(f's_add_u32 m0, s{sslot}, s{84+p}\ns_nop 0\nbuffer_load_dwordx4 v{1+p}, s[4:7], s73 offen lds')
        out.append(f'buffer_load_dwordx4 v{1+p}, s[4:7], s73 offen offset:1024 lds')
    for p in range(2):
        out.append(f's_add_u32 m0, s{sslot}, s{86+p}\ns_nop 0\nbuffer_load_dwordx4 v{3+p}, s[8:11], s74 offen lds')
    out[-1] += '\ns_add_u32 s72, s72, 1\ns_add_u32 s73, s73, 32768'
    return out
def step(a, cur, nxt):
    a('s_waitcnt lgkmcnt(0)')
    fill = reads(1, cur, 1) + dma_setup(cur == 'a')
    for t in interleave(mfmas(0, cur), fill, 0, 1): a(t)
    a('s_waitcnt vmcnt(6) lgkmcnt(0)\ns_barrier')
    for t in addr_update(nxt, 76): a(t)
    rd = reads(0, nxt, 0); dm = dma(75)
    fill = rd[:10] + [rd[10] + '\n' + dm[0], rd[11] + '\n' + dm[1]] + dm[2:]
    fill.append(f's_mov_b32 s75, s76\ns_add_u32 s76, s76, {K2_STAGE}\ns_cmp_lt_u32 s76, {K2_LDS}\ns_cselect_b32 s76, s76, 0\ns_add_u32 s70, s70, 1')
    for t in interleave(mfmas(1, cur), fill, 0, 1): a(t)

def gen_k2(a):
    a.label('k2_kernel')
    a(f'''s_cmp_ge_u32 s2, 256
s_cbranch_scc1 k2_end
s_load_dwordx16 s[32:47], s[0:1], 0
s_load_dwordx16 s[48:63], s[0:1], 64
v_lshrrev_b32 v1, 6, v0
v_and_b32 v0, 63, v0
v_readfirstlane_b32 s64, v1
s_and_b32 s78, s2, 7
s_lshr_b32 s79, s2, 3
s_and_b32 s69, s78, 3
s_lshr_b32 s67, s78, 2
s_lshl_b32 s67, s67, 2
s_and_b32 s80, s79, 3
s_add_u32 s67, s67, s80
s_lshr_b32 s68, s79, 2
s_and_b32 s65, s64, 3
s_lshr_b32 s66, s64, 2
s_mul_i32 s70, s69, 22
s_add_u32 s71, s70, 22
s_mov_b32 s72, s70
s_mul_i32 s73, s67, 88
s_add_u32 s73, s73, s70
s_lshl_b32 s73, s73, 15
v_lshrrev_b32 v21, 3, v0
v_and_b32 v22, 7, v0
v_and_b32 v23, 15, v0
v_lshrrev_b32 v24, 4, v0
v_lshlrev_b32 v25, 4, v0
s_lshr_b32 s80, s64, 1
s_lshl_b32 s80, s80, 2
s_and_b32 s81, s64, 1
s_lshl_b32 s81, s81, 1
s_add_u32 s81, s81, s69
s_and_b32 s82, s81, 3
s_add_u32 s82, s82, s80
s_lshl_b32 s82, s82, 11
v_add_u32 v1, s82, v25
s_add_u32 s81, s81, 1
s_and_b32 s82, s81, 3
s_add_u32 s82, s82, s80
s_lshl_b32 s82, s82, 11
v_add_u32 v2, s82, v25
s_lshl_b32 s80, s68, 7
s_lshl_b32 s81, s64, 4
s_add_u32 s80, s80, s81
v_add_u32 v26, s80, v21
v_lshlrev_b32 v26, 11, v26
v_lshrrev_b32 v27, 1, v21
v_xor_b32 v27, v27, v22
v_lshl_add_u32 v3, v27, 4, v26
v_xor_b32 v4, 64, v3
v_add_u32 v4, 0x4000, v4
s_lshl_b32 s80, s64, 3
v_add_u32 v26, s80, v24
v_lshlrev_b32 v26, 11, v26
s_lshl_b32 s80, s68, 8
v_add_u32 v26, s80, v26
v_lshlrev_b32 v27, 1, v24
v_xor_b32 v27, v27, v23
v_lshl_add_u32 v5, v27, 4, v26
v_xor_b32 v6, 128, v5
v_add_u32 v6, 0x2000, v6
s_lshl_b32 s84, s64, 12
s_add_u32 s85, s84, 2048
s_lshl_b32 s86, s64, 11
s_add_u32 s86, s86, 32768
s_add_u32 s87, s86, 1024
s_mov_b32 s82, 2097152
s_mov_b32 s83, 7340032
s_cmp_lt_u32 s69, 2
s_cbranch_scc1 k2_pa
v_mov_b32 v3, v5
v_mov_b32 v4, v6
k2_pa:
s_waitcnt lgkmcnt(0)''')
    srd(a, 4, 62, A2_SIZE)
    a('s_mov_b32 s11, 0x00020000')
    for st in range(3):
        a(f's_mov_b32 s75, {st*K2_STAGE}')
        for t in dma_setup(True)[:2]: a(t)
        for t in dma(75): a(t)
    a(f'''s_mov_b32 s75, 0
s_mov_b32 s76, {K2_STAGE}
v_bfe_u32 v26, v0, 2, 2
v_and_b32 v27, 3, v0
v_lshl_add_u32 v28, v24, 3, v26
v_and_b32 v29, 1, v27
v_lshlrev_b32 v29, 2, v29
v_lshrrev_b32 v30, 1, v27
v_lshl_or_b32 v29, v30, 4, v29
v_xor_b32 v28, v28, v29
v_lshl_add_u32 v28, v27, 5, v28
v_lshlrev_b32 v28, 3, v28
s_lshl_b32 s80, s65, 13
v_add_u32 v7, s80, v28
v_xor_b32 v8, 32, v7
v_add_u32 v11, s80, v25
v_lshrrev_b32 v28, 1, v23
v_xor_b32 v28, v28, v24
v_lshlrev_b32 v28, 4, v28
v_lshl_add_u32 v28, v23, 7, v28
s_lshl_b32 s80, s66, 13
s_add_u32 s80, s80, 32768
v_add_u32 v9, s80, v28
v_xor_b32 v10, 64, v9
v_lshl_add_u32 v28, v24, 2, v26
v_and_b32 v29, 7, v28
v_lshlrev_b32 v29, 1, v29
s_lshl_b32 s80, s66, 3
v_add_u32 v30, s80, v30
v_xor_b32 v29, v29, v30
v_lshlrev_b32 v29, 4, v29
v_lshl_add_u32 v29, v28, 8, v29
v_and_b32 v30, 1, v27
v_lshl_add_u32 v29, v30, 3, v29
v_add_u32 v12, 32768, v29
v_xor_b32 v13, 32, v12
v_xor_b32 v14, 64, v12
v_xor_b32 v15, 96, v12''')
    for k in range(128): a(f'v_mov_b32 v{ACCA+k}, 0')
    a('''s_waitcnt vmcnt(12)
s_barrier
s_cmp_ge_u32 s69, 2
s_cbranch_scc1 k2_bentry''')
    for t in addr_update('a', 75): a(t)
    for t in reads(0, 'a', 0): a(t)
    a('s_cmp_eq_u32 s69, 0\ns_cselect_b32 s77, 22, 31')
    a.label('k2_la')
    step(a, 'a', 'a')
    a('s_cmp_lt_u32 s70, s77\ns_cbranch_scc1 k2_la\ns_cmp_eq_u32 s69, 0\ns_cbranch_scc1 k2_epi')
    step(a, 'a', 'b')
    a('s_branch k2_lb')
    a.label('k2_bentry')
    for t in addr_update('b', 75): a(t)
    for t in reads(0, 'b', 0): a(t)
    a.label('k2_lb')
    step(a, 'b', 'b')
    a('s_cmp_lt_u32 s70, s71\ns_cbranch_scc1 k2_lb')
    a.label('k2_epi')
    srd(a, 12, 62, WS_SIZE)
    srd(a, 16, 32, 4194304)
    srd(a, 20, 48, 2048)
    srd(a, 24, 58, 8388608)
    srd(a, 28, 60, 256)
    a(f'''s_waitcnt lgkmcnt(0)
v_and_b32 v23, 15, v0
v_lshrrev_b32 v24, 4, v0
v_lshrrev_b32 v26, 2, v23
v_lshlrev_b32 v26, 4, v26
v_and_b32 v27, 3, v23
s_lshl_b32 s80, s67, 8
s_lshl_b32 s81, s65, 6
s_add_u32 s80, s80, s81
v_add3_u32 v26, v26, v27, s80
v_lshlrev_b32 v27, 2, v26''')
    for b in range(4):
        a(f'''s_add_u32 s81, s69, {b}
s_and_b32 s81, s81, 3
s_lshl_b32 s81, s81, 4
s_add_u32 s81, s81, {G_OFF}
buffer_load_dword v{160+b}, v27, s[12:15], s81 offen''')
    a(f'''s_lshl_b32 s81, s69, 2
v_add_u32 v26, s81, v26
s_lshl_b32 s80, s68, 7
s_lshl_b32 s81, s66, 6
s_add_u32 s80, s80, s81
v_lshl_add_u32 v27, v24, 2, s80
v_lshlrev_b32 v28, 1, v27
v_lshl_add_u32 v29, v26, 11, v28
v_lshlrev_b32 v30, 2, v27
v_lshl_add_u32 v30, v26, 12, v30''')
    for nb in range(4):
        a(f'buffer_load_dwordx2 v[{168+2*nb}:{169+2*nb}], v29, s[16:19], 0 offen offset:{32*nb}')
        a(f'buffer_load_dwordx2 v[{176+2*nb}:{177+2*nb}], v28, s[20:23], 0 offen offset:{32*nb}')
    a('s_waitcnt vmcnt(8)')
    for b in range(4):
        a(f'v_sub_f32 v{164+b}, 1.0, v{160+b}\nv_cvt_pk_bf16_f32 v{164+b}, v{164+b}, v{164+b}\nv_lshlrev_b32 v{164+b}, 16, v{164+b}')
    a(f'''s_lshl_b32 s80, s67, 3
s_add_u32 s88, s80, s68
s_lshl_b32 s80, s88, 19
s_add_u32 s80, s80, {X_OFF}
s_lshl_b32 s81, s64, 12
s_add_u32 s89, s80, s81
s_lshl_b32 s81, s69, 15
s_add_u32 s90, s89, s81
v_lshlrev_b32 v25, 4, v0''')
    for b in [1, 2, 3, 0]:
        for k in range(16):
            a(f'v_mul_f32 v{ACCA+16*b+k}, v{ACCA+16*b+k}, v{160+b}\nv_fmac_f32 v{ACCA+16*b+k}, v{ACCB+16*b+k}, v{164+b}')
        if b:
            a(f's_add_u32 s81, s69, {b}\ns_and_b32 s81, s81, 3\ns_lshl_b32 s81, s81, 17\ns_add_u32 s81, s81, s90')
            for nb in range(4):
                d = ACCA + 16*b + 4*nb
                a(f'buffer_store_dwordx4 v[{d}:{d+3}], v25, s[12:15], s81 offen offset:{1024*nb} sc0 sc1')
    a('s_waitcnt vmcnt(12)')
    for nb in range(4):
        for h in range(2):
            x = 168+2*nb+h; dd = 176+2*nb+h; o = ACCA + 4*nb + 2*h
            a(f'''v_lshlrev_b32 v184, 16, v{x}
v_and_b32 v185, 0xffff0000, v{x}
v_lshlrev_b32 v186, 16, v{dd}
v_and_b32 v187, 0xffff0000, v{dd}
v_mul_f32 v184, v184, v186
v_mul_f32 v185, v185, v187
v_cvt_pk_bf16_f32 v184, v184, v185
v_lshlrev_b32 v185, 16, v184
v_and_b32 v184, 0xffff0000, v184
v_fmac_f32 v{o}, v185, v160
v_fmac_f32 v{o+1}, v184, v160''')
    a(f'''s_waitcnt vmcnt(0)
s_barrier
s_cmp_lg_u32 s64, 0
s_cbranch_scc1 k2_nopoll
s_lshl_b32 s80, s88, 2
s_add_u32 s81, s80, s69
v_mov_b32 v184, 0
v_mov_b32 v185, 1
s_mov_b64 exec, 1
buffer_store_byte v185, v184, s[28:31], s81 offen sc0 sc1
s_mov_b64 exec, -1''')
    a.label('k2_poll')
    a(f'''buffer_load_dword v186, v184, s[28:31], s80 offen sc0 sc1
s_waitcnt vmcnt(0)
v_readfirstlane_b32 s81, v186
s_cmp_eq_u32 s81, 0x01010101
s_cbranch_scc1 k2_nopoll
s_sleep 1
s_branch k2_poll''')
    a.label('k2_nopoll')
    a('s_barrier\ns_lshl_b32 s81, s69, 17\ns_add_u32 s89, s89, s81')
    for b in range(1, 4):
        a(f's_add_u32 s81, s69, {b}\ns_and_b32 s81, s81, 3\ns_lshl_b32 s81, s81, 15\ns_add_u32 s81, s81, s89')
        for nb in range(4):
            d = ACCA + 16*b + 4*nb
            a(f'buffer_load_dwordx4 v[{d}:{d+3}], v25, s[12:15], s81 offen offset:{1024*nb} sc0 sc1')
    a('s_waitcnt vmcnt(0)')
    for nb in range(4):
        for e in range(4):
            o = ACCA + 4*nb + e
            a(f'v_add_f32 v{o}, v{o}, v{o+16}\nv_add_f32 v{o+32}, v{o+32}, v{o+48}\nv_add_f32 v{o}, v{o}, v{o+32}')
        a(f'buffer_store_dwordx4 v[{ACCA+4*nb}:{ACCA+4*nb+3}], v30, s[24:27], 0 offen offset:{64*nb}')
    a.label('k2_end')
    a('s_endpgm')
```

```python
import sys, os
sys.path.insert(0, os.path.dirname(__file__))
from asmlib import *
import k1, k2
NAME = 'gated_mix__ssm_conv_s5__dense_activation_relu__prompt'
def desc(name, vg):
    return f'''.p2align 6
.amdhsa_kernel {name}
  .amdhsa_next_free_vgpr {vg}
  .amdhsa_next_free_sgpr 102
  .amdhsa_accum_offset {vg}
  .amdhsa_group_segment_fixed_size 0
  .amdhsa_kernarg_size 128
  .amdhsa_user_sgpr_count 2
  .amdhsa_user_sgpr_kernarg_segment_ptr 1
  .amdhsa_system_sgpr_workgroup_id_x 1
.end_amdhsa_kernel
'''
def main(out):
    hdr = f'''; two launches: k1 = input GEMMs + scan, k2 = output GEMM (split-K 4) + gate mix
; @launch kernel=k1_kernel grid=(256,1,1) block=(512,1,1) lds={k1.K1_LDS}
; @launch kernel=k2_kernel grid=(256,1,1) block=(512,1,1) lds={k2.K2_LDS}
.amdgcn_target "amdgcn-amd-amdhsa--gfx950"
.text
'''
    s = hdr
    for nm, g in (('k1_kernel', k1.gen_k1), ('k2_kernel', k2.gen_k2)):
        a = Asm(); g(a)
        s += f'.globl {nm}\n.p2align 8\n.type {nm},@function\n' + a.text()
    s += '.section .rodata,"a"\n' + desc('k1_kernel', 240) + desc('k2_kernel', 224)
    open(out, 'w').write(s)
main(sys.argv[1] if len(sys.argv) > 1 else f'cdna_kernels/{NAME}.s')
```

```python
import re
TRANS = ('v_exp_f32','v_log_f32','v_rcp_f32','v_rsq_f32','v_sqrt_f32','v_sin_f32','v_cos_f32')
def regs_of(tok):
    tok = tok.strip()
    tok = re.sub(r'^-|^abs\(|\)$|^\|', '', tok)
    m = re.fullmatch(r'([vsa])\[(\d+):(\d+)\]', tok)
    if m: return {(m.group(1), k) for k in range(int(m.group(2)), int(m.group(3))+1)}
    m = re.fullmatch(r'([vsa])(\d+)', tok)
    if m: return {(m.group(1), int(m.group(2)))}
    if tok == 'vcc': return {('s', 106), ('s', 107)}
    if tok == 'm0': return {('m', 0)}
    if tok == 'exec': return {('e', 0)}
    return set()
class Ins:
    def __init__(s, text):
        s.text = text
        t = text.split(';')[0].strip()
        p = t.split(None, 1)
        s.op = p[0]
        rest = p[1] if len(p) > 1 else ''
        ops = [o.strip() for o in rest.split(',')]
        if ops:
            ops[-1] = ops[-1].split()[0] if ops[-1] else ''
        s.mods = rest
        s.ops = ops
        op = s.op
        s.mfma = op.startswith('v_mfma')
        s.valu = op.startswith('v_') and not s.mfma
        s.trans = op in TRANS
        s.salu = op.startswith('s_')
        s.vmem = op.startswith('buffer_') or op.startswith('global_')
        s.ds = op.startswith('ds_')
        s.dpp = 'row_' in rest or 'quad_perm' in rest
        s.lds = s.vmem and rest.split()[-1] == 'lds'
        R = [regs_of(o) for o in ops]
        s.w = set(); s.r = set(); s.stdata = set(); s.rc = set()
        if s.mfma:
            s.w = R[0]; s.r = R[1] | R[2] | R[3]; s.rab = R[1] | R[2]; s.rc = R[3]
        elif s.valu:
            if op.startswith('v_cmp'):
                s.w = R[0]; s.r = set().union(*R[1:])
            elif op.startswith('v_permlane') and 'swap' in op:
                s.w = R[0] | R[1]; s.r = R[0] | R[1]
            else:
                s.w = R[0]; s.r = set().union(*R[1:]) if len(R) > 1 else set()
                if op.startswith(('v_fmac', 'v_dot2c', 'v_writelane')) or s.dpp: s.r |= R[0]
                if '_co_' in op: s.w |= R[1]
        elif s.salu:
            if op.startswith(('s_cmp', 's_cbranch', 's_branch', 's_waitcnt', 's_nop', 's_barrier', 's_endpgm', 's_setprio', 's_sleep')):
                s.r = set().union(*R) if R else set()
            else:
                s.w = R[0]; s.r = set().union(*R[1:]) if len(R) > 1 else set()
        elif s.vmem:
            if 'store' in op or 'atomic' in op:
                s.r = set().union(*R)
                if 'x4' in op or 'x3' in op: s.stdata = R[0]
            elif s.lds:
                s.r = set().union(*R) | {('m', 0)}
            elif op in ('buffer_wbl2', 'buffer_inv'):
                pass
            else:
                s.w = R[0]; s.r = set().union(*R[1:])
        elif s.ds:
            if 'write' in op: s.r = set().union(*R)
            else: s.w = R[0]; s.r = set().union(*R[1:])
        s.states = 1
        if op == 's_nop': s.states = int(ops[0]) + 1
def need(p, c):
    n = 0
    vw = {x for x in p.w if x[0] in 'va'}; sw = {x for x in p.w if x[0] == 's'}
    if p.valu:
        if c.mfma and vw & c.r: n = max(n, 2)
        if p.trans and c.valu and not c.trans and vw & c.r: n = max(n, 1)
        if p.trans and (c.vmem or c.ds) and vw & c.r: n = max(n, 1)
        if sw & c.r:
            if c.valu: n = max(n, 4 if 'lane' in c.op else 2)
            if c.vmem: n = max(n, 5)
            if c.salu: n = max(n, 1)
        if vw & c.r:
            if c.op.startswith(('v_readlane', 'v_readfirstlane')): n = max(n, 1)
            if c.dpp or c.op.startswith('v_permlane'): n = max(n, 2)
    if p.mfma:
        if (c.valu or c.vmem or c.ds) and vw & (c.r | c.w): n = max(n, 8)
        if c.mfma:
            if vw & c.rab: n = max(n, 8)
            if vw & c.rc and c.rc != vw: n = max(n, 6)
        if c.valu and p.rc & c.w: n = max(n, 3)
    if p.salu and ('m', 0) in p.w and c.lds: n = max(n, 1)
    if p.stdata & c.w: n = max(n, 2 if c.valu else 1)
    return n
class Asm:
    def __init__(s):
        s.lines = []; s.hist = []
    def raw(s, t):
        s.lines.append(t)
    def label(s, name):
        s.lines.append(name + ':'); s.hist = []
    def __call__(s, text):
        for t in text.strip().split('\n'):
            t = t.strip()
            if not t or t.startswith(';'): continue
            if t.endswith(':'):
                s.label(t[:-1]); continue
            c = Ins(t)
            d = 0; pad = 0
            for p in reversed(s.hist):
                pad = max(pad, need(p, c) - d)
                d += p.states
                if d > 12: break
            if pad > 0:
                nop = Ins('s_nop %d' % (pad - 1)); s.hist.append(nop); s.lines.append('    ' + nop.text)
            s.hist.append(c); s.hist = s.hist[-24:]
            s.lines.append('    ' + t)
    def text(s): return '\n'.join(s.lines) + '\n'
def interleave(mf, fill, start=0, every=1):
    out = []; k = 0
    for n, m in enumerate(mf):
        out.append(m)
        if n >= start and (n - start) % every == 0 and k < len(fill):
            out.append(fill[k]); k += 1
    out += fill[k:]
    return out

import os
STAMP = bool(os.environ.get('STAMP'))
STAMP_OFF = 0x1700000
def stamp(a, k, base):
    if STAMP: a(f'{"s_memrealtime" if os.environ.get("STAMPRT") else "s_memtime"} s[98:99]\ns_waitcnt lgkmcnt(0)\nv_mov_b32 v{base+k}, s98')
def stamp_flush(a, base, kern, srdreg, wavereg):
    if not STAMP: return
    stamp(a, 7, base)
    a(f"""s_lshl_b32 s98, s2, 3
s_add_u32 s98, s98, s{wavereg}
s_lshl_b32 s98, s98, 5
s_add_u32 s98, s98, {STAMP_OFF + kern*65536}
v_mov_b32 v0, 0
s_mov_b64 exec, 1
buffer_store_dwordx4 v[{base}:{base+3}], v0, s[{srdreg}:{srdreg+3}], s98 offen
buffer_store_dwordx4 v[{base+4}:{base+7}], v0, s[{srdreg}:{srdreg+3}], s98 offen offset:16""")
EXP = os.environ.get('EXP', '')
```

```python
from asmlib import *
A2_OFF = 0; A2_SIZE = 8*88*32768
G_OFF = 0x1600000; AGG_OFF = 0x1610000; X_OFF = 0x2000000; FLAG_OFF = 0x1640000
WS_SIZE = 268435456
LOG2E = 0x3fb8aa3b; INV2PI = 0x3e22f983
K1_AW = 47104; K1_BU = 0; K1_A0 = 16384; K1_DUMMY = K1_A0 + 3*K1_AW; K1_ESC = K1_DUMMY; K1_LDS = K1_ESC + 4096

def srd(a, d, lo, rec, off=0):
    if off:
        a(f's_add_u32 s{d}, s{lo}, {off}\ns_addc_u32 s{d+1}, s{lo+1}, 0')
    else:
        a(f's_mov_b32 s{d}, s{lo}\ns_mov_b32 s{d+1}, s{lo+1}')
    a(f's_mov_b32 s{d+2}, {rec}\ns_mov_b32 s{d+3}, 0x00020000')

def cpow(a, dr, di, a2, th, n, t0, t1):
    a(f'''v_mul_f32 v{t0}, {n}, v{a2}
v_mul_f32 v{t1}, {n}, v{th}
v_exp_f32 v{t0}, v{t0}
v_fract_f32 v{t1}, v{t1}
v_cos_f32 v{dr}, v{t1}
v_sin_f32 v{di}, v{t1}
v_mul_f32 v{dr}, v{dr}, v{t0}
v_mul_f32 v{di}, v{di}, v{t0}''')

def params(a, lre, lim, ldt, a2, th):
    a(f'''v_lshlrev_b32 v{lre}, 16, v{lre}
v_lshlrev_b32 v{lim}, 16, v{lim}
v_lshlrev_b32 v{ldt}, 16, v{ldt}
v_mul_f32 v{ldt}, {LOG2E}, v{ldt}
v_exp_f32 v{ldt}, v{ldt}
v_cvt_pk_bf16_f32 v{ldt}, v{ldt}, v{ldt}
v_lshlrev_b32 v{ldt}, 16, v{ldt}
v_mul_f32 v{a2}, v{ldt}, v{lre}
v_mul_f32 v{th}, v{ldt}, v{lim}
v_mul_f32 v{a2}, {LOG2E}, v{a2}
v_mul_f32 v{th}, {INV2PI}, v{th}''')

SC = os.environ.get('SC', 'sc1')
WT = ' ' + os.environ.get('WT', '')
ACC = 64; SET = [160, 200]
def k1_frag(st, kind, n):
    base = SET[st] + (0 if kind == 'A' else 16) + 4*n
    return base
def k1_mfmas(st, c):
    nb = 6 if c == 0 else 5
    out = []
    for n in range(nb):
        for b in range(4):
            d = ACC + (n*4 + b)*4
            A = k1_frag(st, 'A', b); B = k1_frag(st, 'B', n)
            if n < 2: x, y = A, B
            else: x, y = B, A
            out.append(f'v_mfma_f32_16x16x32_bf16 v[{d}:{d+3}], v[{x}:{x+3}], v[{y}:{y+3}], v[{d}:{d+3}]')
    return out
def k1_reads(st, c, sub):
    def rdA(b):
        f = k1_frag(st, 'A', b); return f'ds_read_b128 v[{f}:{f+3}], v{50+sub} offset:{b*2048}'
    def rdB(n):
        f = k1_frag(st, 'B', n); return f'ds_read_b128 v[{f}:{f+3}], v{52+sub} offset:{n*2048}'
    def rdW(n, h):
        f = k1_frag(st, 'B', 2+n) + 2*h
        if c == 1 and n == 2: reg, blk = 55, 0
        else: reg, blk = 54, n
        return f'ds_read_b64_tr_b16 v[{f}:{f+1}], v{reg} offset:{sub*7168 + h*1792 + blk*32}'
    out = [rdA(0), rdB(0), rdA(1), rdA(2), rdA(3), rdB(1)]
    for n in range(4 if c == 0 else 3):
        out += [rdW(n, 0), rdW(n, 1)]
    return out
def k1_dma_aw():
    out = []
    for p in range(4):
        out.append(f's_add_u32 m0, s93, s{[73,100,101,78][p]}\ns_nop 0\nbuffer_load_dwordx4 v{1+p}, s[4:7], s70 offen lds')
    out.append(f's_add_u32 m0, s93, s75\ns_add_u32 s70, s70, 128\nbuffer_load_dwordx4 v6, s[12:15], s71 offen lds')
    out.append(f's_mul_i32 s97, s93, s77\ns_add_u32 m0, s97, s76\ns_nop 0\nbuffer_load_dwordx4 v7, s[12:15], s71 offen lds\ns_add_u32 s71, s71, 458752')
    return out
def k1_dma_bu():
    return f's_add_u32 m0, s94, s74\ns_nop 0\nbuffer_load_dwordx4 v5, s[8:11], s72 offen lds\ns_add_u32 s72, s72, 128'
def k1_pf():
    return 'buffer_load_dword v49, v48, s[28:31], s79 offen\ns_add_u32 s79, s79, s92'
def place(mf, early, spread, ph):
    n = len(mf); slots = [[] for _ in range(n)]
    for k, e in enumerate(early): slots[min(k, n-1)].append(e)
    m = len(spread)
    for k, e in enumerate(spread): slots[min(n-1, int((k + ph) * n / m))].append(e)
    out = []
    for k in range(n): out += [mf[k]] + slots[k]
    return out
def weave(seq, ex):
    idx = [k for k, t in enumerate(seq) if t.startswith('v_mfma')]
    if not ex: return seq
    per = -(-len(ex) // len(idx)); out = []; e = 0
    for k, t in enumerate(seq):
        out.append(t)
        if t.startswith('v_mfma'):
            out += ex[e:e+per]; e += per
    return out
NSW = 1 if os.environ.get('SW') else 0
def k1_sweep(a):
    if not NSW: return
    a(f'''s_cmp_eq_u32 s64, 2
s_cselect_b64 s[28:29], s[38:39], s[32:33]
s_cmp_eq_u32 s64, 3
s_cselect_b64 s[28:29], s[40:41], s[28:29]
s_cmp_ge_u32 s64, 4
s_cselect_b64 s[28:29], s[52:53], s[28:29]
s_mov_b32 s30, 4194304
s_cselect_b32 s30, 7340032, s30
s_mov_b32 s31, 0x00020000
s_lshl_b32 s80, s2, 2
s_add_u32 s80, s80, s64
s_sub_u32 s80, s80, 4
s_lshl_b32 s81, s2, 1
s_add_u32 s81, s81, s64
s_cmp_ge_u32 s64, 4
s_cselect_b32 s80, s80, s81
s_and_b32 s81, s64, 6
s_cmp_eq_u32 s81, 2
s_cselect_b32 s80, s2, s80
s_cselect_b32 s30, 2097152, s30
s_lshl_b32 s80, s80, 13
v_lshlrev_b32 v48, 7, v0
buffer_load_dword v49, v48, s[28:31], s80 offen''')
def k1_mw(a):
    a(f'''s_cmp_eq_u32 s64, 6
s_cselect_b64 s[24:25], s[42:43], s[54:55]
s_cmp_eq_u32 s64, 7
s_cselect_b64 s[24:25], s[44:45], s[24:25]
s_mov_b32 s27, 0x00020000
s_lshl_b32 s80, s2, 2
s_add_u32 s80, s80, s65
s_cmp_eq_u32 s64, 5
s_cselect_b32 s81, 1, 0
s_sub_u32 s80, s80, s81
s_cmp_lt_u32 s64, 6
s_cselect_b32 s80, s80, s2
s_mov_b32 s26, 2097152
s_cselect_b32 s26, 7340032, s26
s_cmp_eq_u32 s65, 0
s_cselect_b32 s26, 0, s26
s_lshl_b32 s80, s80, 13
v_lshlrev_b32 v36, 7, v0
v_add_u32 v36, s80, v36''')
    k1_sweep(a)
def k1_step(a, c, dma0, dma1, bu, last, vm, first=False, ex=[], mw=False):
    aw = k1_dma_aw()
    if EXP in ('nodma',): dma0 = dma1 = bu = False
    ph = 0.2 if c == 0 else 0.7
    a('s_waitcnt lgkmcnt(0)')
    m0 = k1_mfmas(0, c)
    if first: m0 = [re.sub(r', v\[\d+:\d+\]$', ', 0', m) for m in m0]
    h = len(ex)//2
    for t in weave(place(m0, k1_reads(1, c, 1), (aw + ['\n'.join(k1_small())] if first else aw[3:] if dma0 else []) + ([k1_pf()]*NPF0 if first else []), ph), ex[:h]): a(t)
    if not last:
        a(f's_waitcnt vmcnt({vm}) lgkmcnt(0)\ns_barrier' if EXP != 'novm' else 's_waitcnt lgkmcnt(0)\ns_barrier')
    else:
        a('s_waitcnt lgkmcnt(0)')
    fill = []
    if not last:
        a(f'''s_mov_b32 s93, s96
s_mov_b32 s96, s95
v_add_u32 v50, s95, v8
v_xor_b32 v52, 0x2000, v52
v_add_u32 v54, s95, v12
v_add_u32 v55, s95, v13''')
        fill = k1_reads(0, c, 0)
        fill[0] += '\nv_add_u32 v51, s95, v9\nv_xor_b32 v53, 0x2000, v53'
        fill[2] += f'\ns_add_u32 s95, s95, {K1_AW}\ns_cmp_lt_u32 s95, {3*K1_AW}\ns_cselect_b32 s95, s95, 0'
        if bu: fill[1] += '\n' + k1_dma_bu() + '\ns_xor_b32 s94, s94, 0x2000'
    sp = (aw[:3] if dma1 else []) + ([k1_pf()] if PF and dma1 else [])
    if mw: fill[5] += '\nbuffer_load_dword v49, v36, s[24:27], 0 offen'
    for t in weave(place(k1_mfmas(1, c), fill, sp, ph), ex[h:]): a(t)

PF = int(os.environ.get('PF', '0')); PFD = int(os.environ.get('PFD', '4')); NPF0 = PFD if PF else 0
def k1_pf_setup(a):
    if not PF: return
    a(f'''s_and_b32 s80, s64, 3
s_cmp_eq_u32 s80, 1
s_cselect_b64 s[28:29], s[38:39], s[32:33]
s_cmp_eq_u32 s80, 2
s_cselect_b64 s[28:29], s[40:41], s[28:29]
s_cmp_eq_u32 s80, 3
s_cselect_b64 s[28:29], s[52:53], s[28:29]
s_movk_i32 s92, 128
s_mov_b32 s30, 2097152
s_cselect_b32 s92, 458752, s92
s_cselect_b32 s30, 7340032, s30
s_mov_b32 s31, 0x00020000
s_cmp_eq_u32 s80, 0
s_cselect_b32 s30, 4194304, s30
; x row = 256i + 32(j&7) + l (l<32)
s_lshl_b32 s81, s67, 8
s_and_b32 s82, s68, 7
s_lshl_b32 s82, s82, 5
s_add_u32 s81, s81, s82
; B row = 32j + 8(i&3) + l (l<8)
s_lshl_b32 s82, s68, 5
s_and_b32 s85, s67, 3
s_lshl_b32 s86, s85, 3
s_add_u32 s82, s82, s86
s_cmp_eq_u32 s80, 0
s_cselect_b32 s81, s81, s82
s_cselect_b32 s82, 32, 8
v_add_u32 v48, s81, v0
v_lshlrev_b32 v48, 11, v48
s_lshl_b32 s85, s85, 4
v_lshrrev_b32 v46, 2, v0
v_add_u32 v46, s85, v46
v_mul_u32_u24 v46, 7168, v46
v_and_b32 v47, 3, v0
v_lshl_add_u32 v46, v47, 7, v46
s_and_b32 s85, s84, 0xffffff80
v_add_u32 v46, s85, v46
v_mov_b32 v45, 0x80000000
v_cmp_eq_u32 vcc, 3, v47
v_cndmask_b32 v46, v46, v45, vcc
v_cmp_le_u32 vcc, s82, v0
v_cndmask_b32 v48, v48, v45, vcc
s_cmp_eq_u32 s80, 3
s_cbranch_scc0 k1_pfa
v_mov_b32 v48, v46
k1_pfa:
s_mul_i32 s79, s92, 3
s_cmp_ge_u32 s64, 4
s_cselect_b32 s80, 64, 0
s_add_u32 s79, s79, s80
s_cselect_b32 s30, {'s30' if PF == 2 else '0'}, s30''')

def k1_extra():
    L = []
    def a(t): L.extend([x.strip() for x in t.strip().split('\n') if x.strip()])
    params(a, 27, 28, 29, 42, 43)
    params(a, 30, 31, 32, 44, 45)
    cpow(a, 14, 15, 42, 43, '1.0', 46, 47)
    a('s_mov_b32 s85, 0x41800000\ns_mov_b32 s86, 0x43800000\nv_cvt_f32_u32 v39, v26\nv_mul_f32 v39, s85, v39')
    cpow(a, 16, 17, 42, 43, 's85', 46, 47)
    cpow(a, 18, 19, 42, 43, 's86', 46, 47)
    cpow(a, 20, 21, 42, 43, 'v39', 46, 47)
    cpow(a, 24, 25, 44, 45, 's85', 46, 47)
    a(f'''v_mul_f32 v46, v27, v27
v_fmac_f32 v46, v28, v28
v_rcp_f32 v46, v46
v_add_f32 v47, -1.0, v14
v_mul_f32 v22, v47, v27
v_fmac_f32 v22, v15, v28
v_mul_f32 v23, v15, v27
v_fma_f32 v23, -v47, v28, v23
v_add_f32 v46, v46, v46
v_mul_f32 v22, v22, v46
v_mul_f32 v23, v23, v46''')
    a('v_mov_b32 v40, 0\nv_mov_b32 v41, 0')
    for k in range(8):
        x = 240+k; g = 248+k
        a(f'''v_lshlrev_b32 v42, 16, v{x}
v_and_b32 v43, 0xffff0000, v{x}
v_lshlrev_b32 v44, 16, v{g}
v_and_b32 v45, 0xffff0000, v{g}
v_mul_f32 v42, v42, v44
v_mul_f32 v43, v43, v45
v_cvt_pk_bf16_f32 v42, v42, v43
v_lshlrev_b32 v43, 16, v42
v_and_b32 v42, 0xffff0000, v42
v_add_f32 v40, v40, v43
v_add_f32 v41, v41, v42''')
    a('v_add_f32 v40, v40, v41')
    for m in ['row_shr:1 row_mask:0xf', 'row_shr:2 row_mask:0xf', 'row_shr:4 row_mask:0xf', 'row_shr:8 row_mask:0xf', 'row_bcast:15 row_mask:0xa', 'row_bcast:31 row_mask:0xc']:
        a(f'v_add_f32_dpp v40, v40, v40 {m} bank_mask:0xf')
    a(f'''v_readlane_b32 s85, v40, 63
v_mov_b32 v40, s85
v_cvt_pk_bf16_f32 v40, v40, v40
v_lshlrev_b32 v40, 16, v40
v_mul_f32 v40, {LOG2E | 0x80000000}, v40
v_exp_f32 v40, v40
v_add_f32 v40, 1.0, v40
v_rcp_f32 v40, v40
v_cvt_pk_bf16_f32 v40, v40, v40
v_lshlrev_b32 v40, 16, v40
s_lshl_b32 s85, s87, 2
s_add_u32 s85, s85, {G_OFF}
v_mov_b32 v41, 0
buffer_store_dword v40, v41, s[16:19], s85 offen
s_lshl_b32 s85, s87, 7
s_add_u32 s85, s85, {FLAG_OFF}
buffer_store_dword v41, v41, s[16:19], s85 offen''')
    return L

def k1_small():
    L = []
    def a(t): L.append(t.strip())
    a(f'''s_lshl_b32 s85, s2, 3
s_add_u32 s87, s85, s64
s_lshl_b32 s85, s87, 11
v_lshlrev_b32 v40, 5, v0
buffer_load_dwordx4 v[240:243], v40, s[4:7], s85 offen
buffer_load_dwordx4 v[244:247], v40, s[4:7], s85 offen offset:16
buffer_load_dwordx4 v[248:251], v40, s[20:23], 0 offen
buffer_load_dwordx4 v[252:255], v40, s[20:23], 0 offen offset:16
v_and_b32 v41, 15, v0
v_add_u32 v37, s83, v41
v_lshlrev_b32 v37, 1, v37
v_and_b32 v38, 31, v0
s_lshl_b32 s85, s68, 5
v_add_u32 v38, s85, v38
v_lshlrev_b32 v38, 1, v38''')
    for k, (lo, d) in enumerate([(34, 27), (36, 28), (46, 29)]):
        srd(a, 28, lo, 2048)
        a(f'buffer_load_ushort v{d}, v37, s[28:31], 0 offen\nbuffer_load_ushort v{d+3}, v38, s[28:31], 0 offen\ns_nop 0')
    return L

def gen_k1(a):
    a.label('k1_kernel')
    a(f'''s_cmp_ge_u32 s2, 256
s_cbranch_scc1 k1_end
s_load_dwordx16 s[32:47], s[0:1], 0
s_load_dwordx16 s[48:63], s[0:1], 64
v_lshrrev_b32 v1, 6, v0
v_and_b32 v0, 63, v0
v_readfirstlane_b32 s64, v1
s_and_b32 s78, s2, 7
s_lshr_b32 s79, s2, 3
s_and_b32 s67, s78, 1
s_lshl_b32 s67, s67, 2
s_and_b32 s80, s79, 3
s_add_u32 s67, s67, s80
s_lshr_b32 s68, s78, 1
s_lshl_b32 s68, s68, 3
s_lshr_b32 s80, s79, 2
s_add_u32 s68, s68, s80
s_and_b32 s65, s64, 3
s_lshr_b32 s66, s64, 2
v_lshrrev_b32 v30, 3, v0
v_and_b32 v31, 7, v0
v_and_b32 v32, 15, v0
v_lshrrev_b32 v33, 4, v0
s_lshr_b32 s80, s64, 1
s_lshl_b32 s80, s80, 6
s_and_b32 s81, s64, 1
s_lshl_b32 s82, s81, 3
s_add_u32 s80, s80, s82
s_lshl_b32 s82, s67, 8
s_add_u32 s80, s80, s82
v_lshrrev_b32 v34, 2, v30
v_lshlrev_b32 v34, 4, v34
v_and_b32 v35, 3, v30
v_add3_u32 v34, v34, v35, s80
v_lshlrev_b32 v34, 11, v34
v_lshrrev_b32 v35, 1, v30
v_xor_b32 v35, v35, v31
v_lshl_add_u32 v1, v35, 4, v34
v_xor_b32 v2, 64, v1
v_add_u32 v2, 0x10000, v2
v_add_u32 v3, 0x2000, v1
v_add_u32 v4, 0x2000, v2
s_lshl_b32 s80, s68, 5
s_lshl_b32 s82, s66, 4
s_add_u32 s83, s80, s82
s_lshl_b32 s82, s81, 3
s_add_u32 s82, s82, s83
v_add_u32 v34, s82, v30
v_lshlrev_b32 v34, 11, v34
s_lshl_b32 s82, s81, 2
v_xor_b32 v35, s82, v35
v_lshl_add_u32 v5, v35, 4, v34
; w1 pieces
s_mul_i32 s84, s68, 224
s_lshl_b32 s82, s64, 6
s_movk_i32 s85, 4682
s_movk_i32 s86, 7168''')
    for p in range(2):
        a(f'''v_add_u32 v34, s82, v0
v_mul_lo_u32 v35, v34, s85
v_lshrrev_b32 v35, 16, v35
v_mul_u32_u24 v36, 14, v35
v_sub_u32 v36, v34, v36
v_and_b32 v37, 0x33, v35
v_and_b32 v38, 4, v35
v_lshl_or_b32 v37, v38, 1, v37
v_and_b32 v38, 8, v35
v_lshrrev_b32 v38, 1, v38
v_or_b32 v37, v37, v38
v_mul_lo_u32 v37, v37, s86
v_lshl_add_u32 v37, v36, 4, v37
v_add_u32 v{6+p}, s84, v37
s_add_u32 s82, s82, 512''')
    stamp(a, 0, 56)
    a(f'''v_mov_b32 v35, 0x80000000
v_cmp_lt_u32 vcc, 895, v34
v_cndmask_b32 v7, v7, v35, vcc
s_lshl_b32 s73, s64, 12
s_add_u32 s73, s73, {K1_A0}
s_add_u32 s100, s73, 1024
s_add_u32 s101, s73, 2048
s_add_u32 s78, s73, 3072
s_lshl_b32 s82, s64, 10
s_add_u32 s74, s82, {K1_BU}
s_add_u32 s75, s82, {K1_A0 + 32768}
s_add_u32 s76, s82, {K1_A0 + 40960}
s_sub_u32 s82, s82, 6144
s_add_u32 s82, s82, {K1_DUMMY}
s_cmp_ge_u32 s64, 6
s_cselect_b32 s76, s82, s76
s_cselect_b32 s77, 0, 1
s_mov_b32 s72, 0
s_mov_b32 s70, 0
s_mov_b32 s71, 0
s_waitcnt lgkmcnt(0)''')
    srd(a, 4, 32, 4194304)
    a('''s_bitcmp1_b32 s64, 1
s_cselect_b64 s[8:9], s[40:41], s[38:39]
s_mov_b32 s10, 2097152
s_mov_b32 s11, 0x00020000''')
    srd(a, 12, 52, 7340032)
    srd(a, 16, 62, WS_SIZE)
    srd(a, 20, 56, 2048)
    a('s_mov_b32 s93, 0\ns_mov_b32 s94, 0')
    a(k1_dma_bu())
    for t in k1_dma_aw(): a(t)
    a(f's_mov_b32 s93, {K1_AW}\ns_mov_b32 s94, 0x2000')
    a(k1_dma_bu())
    for t in k1_dma_aw(): a(t)
    a(f's_mov_b32 s93, {2*K1_AW}\ns_mov_b32 s94, 0\ns_mov_b32 s96, 0\ns_mov_b32 s95, {K1_AW}')
    k1_pf_setup(a)
    k1_mw(a)
    a(f'''v_and_b32 v37, 15, v0
v_lshrrev_b32 v34, 1, v37
v_xor_b32 v34, v34, v33
v_lshlrev_b32 v34, 4, v34
v_lshl_add_u32 v34, v37, 7, v34
s_lshl_b32 s80, s65, 13
s_add_u32 s80, s80, {K1_A0}
v_add_u32 v8, s80, v34
v_xor_b32 v9, 64, v8
s_lshl_b32 s80, s66, 12
s_add_u32 s80, s80, {K1_BU}
v_add_u32 v10, s80, v34
v_xor_b32 v11, 64, v10
v_lshrrev_b32 v34, 1, v33
v_lshlrev_b32 v34, 4, v34
v_and_b32 v35, 1, v33
v_lshl_add_u32 v34, v35, 2, v34
v_bfe_u32 v35, v0, 2, 2
v_add_u32 v34, v34, v35
v_mul_u32_u24 v34, 224, v34
v_and_b32 v35, 3, v0
v_lshl_add_u32 v34, v35, 3, v34
s_and_b32 s88, s68, 1
s_cmp_eq_u32 s88, 1
s_cselect_b32 s89, 48, 0
s_cselect_b32 s97, 16, 64
s_cselect_b32 s91, 0, 96
s_cmp_eq_u32 s66, 0
s_cselect_b32 s89, s89, s97
s_lshl_b32 s80, s89, 1
s_add_u32 s80, s80, {K1_A0 + 32768}
v_add_u32 v12, s80, v34
s_lshl_b32 s80, s91, 1
s_add_u32 s80, s80, {K1_A0 + 32768}
v_add_u32 v13, s80, v34
s_lshl_b32 s80, s65, 2
v_add_u32 v26, s80, v33''')
    a(f'''v_mov_b32 v50, v8
v_mov_b32 v51, v9
v_mov_b32 v52, v10
v_mov_b32 v53, v11
v_mov_b32 v54, v12
v_mov_b32 v55, v13
s_waitcnt vmcnt({7 + NSW})
s_barrier
s_mov_b32 s69, 0
s_cmp_eq_u32 s66, 1
s_cbranch_scc1 k1_c1''')
    for c in range(2):
        if c == 1: a.label('k1_c1')
        stamp(a, 1, 56)
        for t in k1_reads(0, c, 0): a(t)
        V = 6 + (1 if PF else 0)
        k1_step(a, c, True, True, True, False, 16 + NPF0 + NSW, first=True)
        a.label(f'k1_loop{c}')
        k1_step(a, c, True, True, True, False, V)
        a(f's_add_u32 s69, s69, 1\ns_cmp_lt_u32 s69, 12\ns_cbranch_scc1 k1_loop{c}')
        ex = k1_extra(); n3 = (len(ex) + 2)//3
        k1_step(a, c, True, False, True, False, V, ex=ex[:n3])
        k1_step(a, c, False, False, False, False, 0, ex=ex[n3:2*n3], mw=True)
        k1_step(a, c, False, False, False, True, 0, ex=ex[2*n3:])
        k1_epi(a, c)
    a.label('k1_end')
    a('s_endpgm')

def k1_epi(a, c):
    RE = lambda t: ACC + (t >> 2)*4 + (t & 3)
    IM = lambda t: ACC + 16 + (t >> 2)*4 + (t & 3)
    stamp(a, 2, 56)
    a('s_nop 7')
    for t in range(1, 16):
        a(f'''v_fmac_f32 v{RE(t)}, v14, v{RE(t-1)}
v_fmac_f32 v{IM(t)}, v14, v{IM(t-1)}
v_fma_f32 v{RE(t)}, -v15, v{IM(t-1)}, v{RE(t)}
v_fmac_f32 v{IM(t)}, v15, v{RE(t-1)}''')
    a(f'''v_and_b32 v32, 15, v0
v_lshlrev_b32 v34, 8, v26
v_lshl_add_u32 v34, v32, 3, v34
v_mov_b32 v36, v{RE(15)}
v_mov_b32 v37, v{IM(15)}
v_add_u32 v34, {K1_ESC + 128*c}, v34
ds_write_b64 v34, v[36:37]
s_waitcnt lgkmcnt(0)
s_barrier''')
    if c == 0:
        a(f'''s_cmp_lg_u32 s64, 0
s_cbranch_scc1 k1_nopub
v_and_b32 v35, 31, v0
v_lshlrev_b32 v35, 3, v35
v_add_u32 v38, {K1_ESC}, v35''')
        for s in range(16): a(f'ds_read_b64 v[{160+2*s}:{161+2*s}], v38 offset:{256*s}')
        srd(a, 20, 62, 65536, AGG_OFF)
        srd(a, 28, 60, 256)
        a('s_waitcnt lgkmcnt(0)')
        for s in range(1, 16):
            p = 160+2*(s-1); q = 160+2*s
            a(f'''v_fmac_f32 v{q}, v24, v{p}
v_fmac_f32 v{q+1}, v24, v{p+1}
v_fma_f32 v{q}, -v25, v{p+1}, v{q}
v_fmac_f32 v{q+1}, v25, v{p}''')
        a(f'''s_lshl_b32 s80, s67, 13
s_lshl_b32 s81, s68, 8
s_add_u32 s80, s80, s81
s_mov_b64 exec, 0xffffffff
buffer_store_dwordx2 v[190:191], v35, s[20:23], s80 offen {SC}
s_mov_b64 exec, 1
s_lshl_b32 s80, s68, 3
s_add_u32 s80, s80, s67
v_mov_b32 v35, 0
v_mov_b32 v36, 1
s_waitcnt vmcnt(0)
buffer_store_byte v36, v35, s[28:31], s80 offen {SC}
s_mov_b64 exec, -1''')
        a.label('k1_nopub')
    stamp(a, 3, 56)
    a(f'v_lshlrev_b32 v38, 3, v32\nv_add_u32 v38, {K1_ESC + 128*c}, v38')
    for s in range(15): a(f'ds_read_b64 v[{160+2*s}:{161+2*s}], v38 offset:{256*s}')
    nh = 4 if c == 0 else 3
    a(f'''s_mul_i32 s80, s68, 112
s_add_u32 s81, s80, s89
s_lshr_b32 s81, s81, 5
s_add_u32 s82, s80, s91
s_lshr_b32 s82, s82, 5
s_mul_i32 s83, s67, 88
s_add_u32 s83, s83, 32
s_lshl_b32 s83, s83, 15
s_lshl_b32 s84, s65, 13
s_add_u32 s83, s83, s84
v_lshlrev_b32 v39, 4, v0
v_add_u32 v40, 4096, v39
s_lshl_b32 s84, s88, 3
v_add_u32 v41, s84, v39
v_add_u32 v42, s84, v40''')
    def kfoff(src, dst):
        a(f's_lshr_b32 s85, s{src}, 1\ns_lshl_b32 s85, s85, 15\ns_and_b32 s86, s{src}, 1\ns_lshl_b32 s86, s86, 10\ns_add_u32 s85, s85, s86\ns_add_u32 s{dst}, s85, s83')
    groups = [(2, 3), (4, 5)] if c == 0 else [(2, 3), (4,)]
    tmp = 192
    for gi, grp in enumerate(groups):
        if len(grp) == 2:
            kfoff(81, 92)
            a('s_add_u32 s81, s81, 1')
        else:
            kfoff(82, 92)
        for b in range(4):
            t = tmp + 4*((gi*4 + b) % 8)
            for u, n in enumerate(grp):
                d = ACC + (n*4 + b)*4
                for e in range(4): a(f'v_max_f32 v{d+e}, 0, v{d+e}')
                a(f'v_cvt_pk_bf16_f32 v{t+2*u}, v{d}, v{d+1}\nv_cvt_pk_bf16_f32 v{t+2*u+1}, v{d+2}, v{d+3}')
            if len(grp) == 2:
                a(f'buffer_store_dwordx4 v[{t}:{t+3}], v{39 + (b >> 1)}, s[16:19], s92 offen offset:{2048*(b & 1)}{WT}')
            else:
                a(f'buffer_store_dwordx2 v[{t}:{t+1}], v{41 + (b >> 1)}, s[16:19], s92 offen offset:{2048*(b & 1)}{WT}')
    a('s_waitcnt lgkmcnt(0)\nv_mov_b32 v28, 0\nv_mov_b32 v29, 0')
    for s in range(15):
        q = 160+2*s; p = q-2
        if s > 0:
            a(f'''v_fmac_f32 v{q}, v16, v{p}
v_fmac_f32 v{q+1}, v16, v{p+1}
v_fma_f32 v{q}, -v17, v{p+1}, v{q}
v_fmac_f32 v{q+1}, v17, v{p}''')
        a(f'v_cmp_lt_u32 vcc, {s}, v26\nv_cndmask_b32 v28, v28, v{q}, vcc\nv_cndmask_b32 v29, v29, v{q+1}, vcc')
    for t in range(16):
        a(f'''v_mul_f32 v44, v22, v{RE(t)}
v_mul_f32 v45, v23, v{RE(t)}
v_fma_f32 v{RE(t)}, -v23, v{IM(t)}, v44
v_fma_f32 v{IM(t)}, -v22, v{IM(t)}, -v45''')
    a('v_mov_b32 v160, v14\nv_mov_b32 v161, v15')
    for t in range(1, 16):
        q = 160+2*t; p = q-2
        a(f'''v_mul_f32 v{q}, v14, v{p}
v_mul_f32 v{q+1}, v14, v{p+1}
v_fma_f32 v{q}, -v15, v{p+1}, v{q}
v_fmac_f32 v{q+1}, v15, v{p}''')
    stamp(a, 4, 56)
    srd(a, 20, 62, 65536, AGG_OFF)
    if c == 1:
        srd(a, 28, 60, 256)
        a(f'''s_cmp_lg_u32 s64, 4
s_cbranch_scc1 k1_nopoll
s_cmp_eq_u32 s67, 0
s_cbranch_scc1 k1_nopoll
s_lshl_b32 s80, s67, 3
s_lshl_b64 s[84:85], 1, s80
s_sub_u32 s84, s84, 1
s_subb_u32 s85, s85, 0
s_and_b32 s84, s84, 0x01010101
s_and_b32 s85, s85, 0x01010101
s_lshl_b32 s80, s68, 3
v_mov_b32 v44, 0''')
        a.label('k1_poll')
        a(f'''buffer_load_dwordx2 v[46:47], v44, s[28:31], s80 offen {SC}
s_waitcnt vmcnt(0)
v_readfirstlane_b32 s86, v46
v_readfirstlane_b32 s87, v47
s_and_b64 s[86:87], s[86:87], s[84:85]
s_cmp_eq_u64 s[86:87], s[84:85]
s_cbranch_scc1 k1_nopoll
s_sleep {os.environ.get('SLP', '4')}
s_branch k1_poll''')
        a.label('k1_nopoll')
    a(f'''s_barrier
s_sub_u32 s80, s67, 7
s_lshl_b32 s80, s80, 13
s_lshl_b32 s81, s68, 8
s_add_u32 s80, s80, s81
s_add_u32 s80, s80, {128*c}
v_lshlrev_b32 v44, 3, v32
v_add_u32 v44, s80, v44''')
    stamp(a, 5, 56)
    for u in range(7):
        a(f'buffer_load_dwordx2 v[{192+2*u}:{193+2*u}], v44, s[20:23], 0 offen {SC}\nv_add_u32 v44, 0x2000, v44')
    a(f'''s_mul_i32 s83, s67, 88
s_and_b32 s84, s68, 30
s_add_u32 s83, s83, s84
s_lshl_b32 s83, s83, 15
s_lshl_b32 s84, s65, 13
s_add_u32 s83, s83, s84
s_lshl_b32 s84, s88, 10
s_add_u32 s83, s83, s84
s_add_u32 s84, s83, 32768
v_lshrrev_b32 v33, 4, v0
v_and_b32 v45, 1, v33
v_lshlrev_b32 v45, 2, v45
v_lshrrev_b32 v46, 1, v33
v_lshl_or_b32 v45, v46, 4, v45
v_add_u32 v46, {16*c}, v32
v_xor_b32 v45, v45, v46
v_lshl_add_u32 v45, v33, 5, v45
v_lshlrev_b32 v39, 3, v45
v_add_u32 v40, 4096, v39
s_waitcnt vmcnt(0)''')
    stamp(a, 6, 56)
    for u in range(1, 7):
        q = 192+2*u; p = q-2
        a(f'''v_fmac_f32 v{q}, v18, v{p}
v_fmac_f32 v{q+1}, v18, v{p+1}
v_fma_f32 v{q}, -v19, v{p+1}, v{q}
v_fmac_f32 v{q+1}, v19, v{p}''')
    a('''v_fmac_f32 v28, v20, v204
v_fmac_f32 v29, v20, v205
v_fma_f32 v28, -v21, v205, v28
v_fmac_f32 v29, v21, v204
v_mul_f32 v46, v22, v28
v_mul_f32 v47, v22, v29
v_fma_f32 v46, -v23, v29, v46
v_fmac_f32 v47, v23, v28''')
    for b in range(4):
        for e in range(4):
            t = 4*b + e; q = 160+2*t
            a(f'''v_fmac_f32 v{RE(t)}, v{q}, v46
v_fma_f32 v{IM(t)}, -v{q}, v47, v{IM(t)}
v_fma_f32 v{RE(t)}, -v{q+1}, v47, v{RE(t)}
v_fma_f32 v{IM(t)}, -v{q+1}, v46, v{IM(t)}''')
        t = 208 + 4*b
        a(f'''v_cvt_pk_bf16_f32 v{t}, v{RE(4*b)}, v{RE(4*b+1)}
v_cvt_pk_bf16_f32 v{t+1}, v{RE(4*b+2)}, v{RE(4*b+3)}
v_cvt_pk_bf16_f32 v{t+2}, v{IM(4*b)}, v{IM(4*b+1)}
v_cvt_pk_bf16_f32 v{t+3}, v{IM(4*b+2)}, v{IM(4*b+3)}
buffer_store_dwordx2 v[{t}:{t+1}], v{39 + (b >> 1)}, s[16:19], s83 offen offset:{2048*(b & 1)}{WT}
buffer_store_dwordx2 v[{t+2}:{t+3}], v{39 + (b >> 1)}, s[16:19], s84 offen offset:{2048*(b & 1)}{WT}''')
    if STAMP: a('s_waitcnt vmcnt(0)')
    stamp_flush(a, 56, 0, 16, 64)
    a('s_endpgm')
```

```python
from asmlib import *
from k1 import srd, A2_SIZE, G_OFF, X_OFF, WS_SIZE, FLAG_OFF, SC
K2_STAGE = 49152; K2_LDS = 3*K2_STAGE
ACCA = 32; ACCB = 96; SET = [160, 192]
def frag(st, kind, n): return SET[st] + (0 if kind == 'A' else 16) + 4*n
def mfmas(st, ty):
    acc = ACCA if ty == 'a' else ACCB
    out = []
    for nb in range(4):
        for b in range(4):
            d = acc + (b*4 + nb)*4
            A = frag(st, 'A', b); B = frag(st, 'B', nb)
            out.append(f'v_mfma_f32_16x16x32_bf16 v[{d}:{d+3}], v[{B}:{B+3}], v[{A}:{A+3}], v[{d}:{d+3}]')
    return out
def reads(st, ty, kf):
    out = []
    if ty == 'a':
        def rA(b):
            f = frag(st, 'A', b)
            return [f'ds_read_b64_tr_b16 v[{f+2*h}:{f+2*h+1}], v{16+h} offset:{b*2048 + kf*1024}' for h in range(2)]
        def rB(n):
            f = frag(st, 'B', n); return [f'ds_read_b128 v[{f}:{f+3}], v{18+kf} offset:{n*2048}']
    else:
        def rA(b):
            f = frag(st, 'A', b); return [f'ds_read_b128 v[{f}:{f+3}], v16 offset:{b*2048 + kf*1024}']
        def rB(n):
            f = frag(st, 'B', n)
            return [f'ds_read_b64_tr_b16 v[{f+2*h}:{f+2*h+1}], v{17+n} offset:{(32*kf + 16*h)*256}' for h in range(2)]
    return rB(0) + rA(0) + rA(1) + rA(2) + rA(3) + rB(1) + rB(2) + rB(3)
def addr_update(ty, sreg):
    if ty == 'a': return [f'v_add_u32 v{16+k}, s{sreg}, v{7+k}' for k in range(4)]
    return [f'v_add_u32 v{16+k}, s{sreg}, v{11+k}' for k in range(5)]
uid = [0]
def dma_setup(generic):
    if generic:
        uid[0] += 1
        return [f'''s_bitcmp1_b32 s72, 0
s_cselect_b64 s[8:9], s[44:45], s[42:43]
s_lshr_b32 s80, s72, 1
s_lshl_b32 s80, s80, 7
s_sub_u32 s81, s72, 32
s_lshl_b32 s81, s81, 17''', f'''s_cmp_lt_u32 s72, 32
s_cselect_b64 s[8:9], s[8:9], s[54:55]
s_cselect_b32 s74, s80, s81
s_cselect_b32 s10, s82, s83
s_cmp_lt_u32 s72, s71
s_cselect_b32 s10, s10, 0
s_cselect_b32 s6, s6, 0''', f'''s_cmp_lg_u32 s72, 32
s_cbranch_scc1 k2_sk{uid[0]}
v_mov_b32 v3, v5
v_mov_b32 v4, v6
k2_sk{uid[0]}:''']
    return ['''s_sub_u32 s74, s72, 32
s_lshl_b32 s74, s74, 17
s_cmp_lt_u32 s72, s71
s_cselect_b32 s10, s10, 0
s_cselect_b32 s6, s6, 0''']
def dma(sslot):
    out = []
    for p in range(2):
        out.append(f's_add_u32 m0, s{sslot}, s{84+p}\ns_nop 0\nbuffer_load_dwordx4 v{1+p}, s[4:7], s73 offen lds')
        out.append(f'buffer_load_dwordx4 v{1+p}, s[4:7], s73 offen offset:1024 lds')
    for p in range(2):
        out.append(f's_add_u32 m0, s{sslot}, s{86+p}\ns_nop 0\nbuffer_load_dwordx4 v{3+p}, s[8:11], s74 offen lds')
    out[-1] += '\ns_add_u32 s72, s72, 1\ns_add_u32 s73, s73, 32768'
    return out
from k1 import place
def step(a, cur, nxt):
    dm = dma(77)
    if EXP == 'nodma': dm = ['s_nop 0']*6
    a('s_waitcnt lgkmcnt(0)')
    for t in place(mfmas(0, cur), reads(1, cur, 1), dm[3:], 0.3): a(t)
    a('s_waitcnt vmcnt(6) lgkmcnt(0)\ns_barrier' if EXP != 'novm' else 's_waitcnt lgkmcnt(0)\ns_barrier')
    for t in addr_update(nxt, 76): a(t)
    rd = reads(0, nxt, 0)
    su = dma_setup(cur == 'a')
    rd[0] += f'\ns_mov_b32 s77, s75\ns_mov_b32 s75, s76\ns_add_u32 s76, s76, {K2_STAGE}\ns_cmp_lt_u32 s76, {K2_LDS}\ns_cselect_b32 s76, s76, 0\ns_add_u32 s70, s70, 1'
    for k, t in enumerate(su): rd[1+k] += '\n' + t
    for t in place(mfmas(1, cur), rd, dm[:3], 0.8): a(t)

def pre_epi(a):
    srd(a, 12, 62, WS_SIZE)
    srd(a, 16, 32, 4194304)
    srd(a, 20, 48, 2048)
    a(f'''v_lshrrev_b32 v26, 2, v23
v_lshlrev_b32 v26, 4, v26
v_and_b32 v27, 3, v23
s_lshl_b32 s80, s67, 8
s_lshl_b32 s81, s65, 6
s_add_u32 s80, s80, s81
v_add3_u32 v26, v26, v27, s80
v_lshlrev_b32 v27, 2, v26''')
    for b in range(4):
        a(f'''s_add_u32 s81, s69, {b}
s_and_b32 s81, s81, 3
s_lshl_b32 s81, s81, 4
s_add_u32 s81, s81, {G_OFF}
buffer_load_dword v{224+b}, v27, s[12:15], s81 offen''')
    a(f'''s_lshl_b32 s81, s69, 2
v_add_u32 v26, s81, v26
s_lshl_b32 s80, s68, 7
s_lshl_b32 s81, s66, 6
s_add_u32 s80, s80, s81
v_lshl_add_u32 v27, v24, 2, s80
v_lshlrev_b32 v28, 1, v27
v_lshl_add_u32 v29, v26, 11, v28
v_lshlrev_b32 v31, 2, v27
v_lshl_add_u32 v31, v26, 12, v31''')
    for nb in range(4):
        a(f'buffer_load_dwordx2 v[{228+2*nb}:{229+2*nb}], v29, s[16:19], 0 offen offset:{32*nb}')
        a(f'buffer_load_dwordx2 v[{236+2*nb}:{237+2*nb}], v28, s[20:23], 0 offen offset:{32*nb}')

def gen_k2(a):
    a.label('k2_kernel')
    a(f'''s_cmp_ge_u32 s2, 256
s_cbranch_scc1 k2_end
s_load_dwordx16 s[32:47], s[0:1], 0
s_load_dwordx16 s[48:63], s[0:1], 64
v_lshrrev_b32 v1, 6, v0
v_and_b32 v0, 63, v0
v_readfirstlane_b32 s64, v1
s_and_b32 s78, s2, 7
s_lshr_b32 s79, s2, 3
s_and_b32 s69, s78, 3
s_lshr_b32 s67, s78, 2
s_lshl_b32 s67, s67, 2
s_and_b32 s80, s79, 3
s_add_u32 s67, s67, s80
s_lshr_b32 s68, s79, 2
s_and_b32 s65, s64, 3
s_lshr_b32 s66, s64, 2
s_mul_i32 s70, s69, 22
s_add_u32 s71, s70, 22
s_mov_b32 s72, s70
s_mul_i32 s73, s67, 88
s_add_u32 s73, s73, s70
s_lshl_b32 s73, s73, 15
v_lshrrev_b32 v21, 3, v0
v_and_b32 v22, 7, v0
v_and_b32 v23, 15, v0
v_lshrrev_b32 v24, 4, v0
v_lshlrev_b32 v25, 4, v0
s_lshr_b32 s80, s64, 1
s_lshl_b32 s80, s80, 2
s_and_b32 s81, s64, 1
s_lshl_b32 s81, s81, 1
s_add_u32 s81, s81, s69
s_and_b32 s82, s81, 3
s_add_u32 s82, s82, s80
s_lshl_b32 s82, s82, 11
v_add_u32 v1, s82, v25
s_add_u32 s81, s81, 1
s_and_b32 s82, s81, 3
s_add_u32 s82, s82, s80
s_lshl_b32 s82, s82, 11
v_add_u32 v2, s82, v25
s_lshl_b32 s80, s68, 7
s_lshl_b32 s81, s64, 4
s_add_u32 s80, s80, s81
v_add_u32 v26, s80, v21
v_lshlrev_b32 v26, 11, v26
v_lshrrev_b32 v27, 1, v21
v_xor_b32 v27, v27, v22
v_lshl_add_u32 v3, v27, 4, v26
v_xor_b32 v4, 64, v3
v_add_u32 v4, 0x4000, v4
s_lshl_b32 s80, s64, 3
v_add_u32 v26, s80, v24
v_lshlrev_b32 v26, 11, v26
s_lshl_b32 s80, s68, 8
v_add_u32 v26, s80, v26
v_lshlrev_b32 v27, 1, v24
v_xor_b32 v27, v27, v23
v_lshl_add_u32 v5, v27, 4, v26
v_xor_b32 v6, 128, v5
v_add_u32 v6, 0x2000, v6
s_lshl_b32 s84, s64, 12
s_add_u32 s85, s84, 2048
s_lshl_b32 s86, s64, 11
s_add_u32 s86, s86, 32768
s_add_u32 s87, s86, 1024
s_mov_b32 s82, 2097152
s_mov_b32 s83, 7340032
s_cmp_lt_u32 s69, 2
s_cbranch_scc1 k2_pa
v_mov_b32 v3, v5
v_mov_b32 v4, v6
k2_pa:
s_waitcnt lgkmcnt(0)''')
    stamp(a, 0, 244)
    srd(a, 4, 62, A2_SIZE)
    a('s_mov_b32 s11, 0x00020000')
    for st in range(3):
        a(f's_mov_b32 s77, {st*K2_STAGE}')
        for t in dma_setup(True)[:2]: a(t)
        for t in dma(77)[:(3 if st == 2 else 6)]: a(t)
    a(f'''s_mov_b32 s75, 0
s_mov_b32 s76, {K2_STAGE}
v_bfe_u32 v26, v0, 2, 2
v_and_b32 v27, 3, v0
v_lshl_add_u32 v28, v24, 3, v26
v_and_b32 v29, 1, v27
v_lshlrev_b32 v29, 2, v29
v_lshrrev_b32 v30, 1, v27
v_lshl_or_b32 v29, v30, 4, v29
v_xor_b32 v28, v28, v29
v_lshl_add_u32 v28, v27, 5, v28
v_lshlrev_b32 v28, 3, v28
s_lshl_b32 s80, s65, 13
v_add_u32 v7, s80, v28
v_xor_b32 v8, 32, v7
v_add_u32 v11, s80, v25
v_lshrrev_b32 v28, 1, v23
v_xor_b32 v28, v28, v24
v_lshlrev_b32 v28, 4, v28
v_lshl_add_u32 v28, v23, 7, v28
s_lshl_b32 s80, s66, 13
s_add_u32 s80, s80, 32768
v_add_u32 v9, s80, v28
v_xor_b32 v10, 64, v9
v_lshl_add_u32 v28, v24, 2, v26
v_and_b32 v29, 7, v28
v_lshlrev_b32 v29, 1, v29
s_lshl_b32 s80, s66, 3
v_add_u32 v30, s80, v30
v_xor_b32 v29, v29, v30
v_lshlrev_b32 v29, 4, v29
v_lshl_add_u32 v29, v28, 8, v29
v_and_b32 v30, 1, v27
v_lshl_add_u32 v29, v30, 3, v29
v_add_u32 v12, 32768, v29
v_xor_b32 v13, 32, v12
v_xor_b32 v14, 64, v12
v_xor_b32 v15, 96, v12''')
    pre_epi(a)
    for k in range(128): a(f'v_mov_b32 v{ACCA+k}, 0')
    a('''s_waitcnt vmcnt(21)
s_barrier''')
    stamp(a, 1, 244)
    a('''s_cmp_ge_u32 s69, 2
s_cbranch_scc1 k2_bentry''')
    for t in addr_update('a', 75): a(t)
    for t in reads(0, 'a', 0): a(t)
    a('s_cmp_eq_u32 s69, 0\ns_cselect_b32 s91, 22, 31')
    a.label('k2_la')
    step(a, 'a', 'a')
    a('s_cmp_lt_u32 s70, s91\ns_cbranch_scc1 k2_la\ns_cmp_eq_u32 s69, 0\ns_cbranch_scc1 k2_epi')
    step(a, 'a', 'b')
    a('s_branch k2_lb')
    a.label('k2_bentry')
    for t in addr_update('b', 75): a(t)
    for t in reads(0, 'b', 0): a(t)
    a.label('k2_lb')
    step(a, 'b', 'b')
    a('s_cmp_lt_u32 s70, s71\ns_cbranch_scc1 k2_lb')
    a.label('k2_epi')
    stamp(a, 2, 244)
    srd(a, 24, 58, 8388608)
    a(f'''s_lshl_b32 s80, s67, 3
s_add_u32 s88, s80, s68
s_lshl_b32 s80, s88, 18
s_add_u32 s80, s80, {X_OFF}
s_lshl_b32 s81, s64, 11
s_add_u32 s89, s80, s81
s_lshl_b32 s81, s69, 14
s_add_u32 s90, s89, s81
v_lshlrev_b32 v25, 4, v0
s_waitcnt lgkmcnt(0)''')
    for b in range(4):
        a(f'v_sub_f32 v{164+b}, 1.0, v{224+b}\nv_cvt_pk_bf16_f32 v{164+b}, v{164+b}, v{164+b}\nv_lshlrev_b32 v{164+b}, 16, v{164+b}')
    for b in [1, 2, 3, 0]:
        for k in range(16):
            a(f'v_mul_f32 v{ACCA+16*b+k}, v{ACCA+16*b+k}, v{224+b}\nv_fmac_f32 v{ACCA+16*b+k}, v{ACCB+16*b+k}, v{164+b}')
        if b:
            a(f's_add_u32 s81, s69, {b}\ns_and_b32 s81, s81, 3\ns_lshl_b32 s81, s81, 16\ns_add_u32 s81, s81, s90')
            t = 168 + 8*(b-1)
            for k in range(8): a(f'v_cvt_pk_bf16_f32 v{t+k}, v{ACCA+16*b+2*k}, v{ACCA+16*b+2*k+1}')
            for h in range(2):
                a(f'buffer_store_dwordx4 v[{t+4*h}:{t+4*h+3}], v25, s[12:15], s81 offen offset:{1024*h} {SC}')
    stamp(a, 3, 244)
    for nb in range(4):
        for h in range(2):
            x = 228+2*nb+h; dd = 236+2*nb+h; o = ACCA + 4*nb + 2*h
            a(f'''v_lshlrev_b32 v192, 16, v{x}
v_and_b32 v193, 0xffff0000, v{x}
v_lshlrev_b32 v194, 16, v{dd}
v_and_b32 v195, 0xffff0000, v{dd}
v_mul_f32 v192, v192, v194
v_mul_f32 v193, v193, v195
v_cvt_pk_bf16_f32 v192, v192, v193
v_lshlrev_b32 v193, 16, v192
v_and_b32 v192, 0xffff0000, v192
v_fmac_f32 v{o}, v193, v224
v_fmac_f32 v{o+1}, v192, v224''')
    a(f'''s_lshl_b32 s80, s88, 12
s_lshl_b32 s81, s64, 7
s_add_u32 s80, s80, s81
s_add_u32 s80, s80, {FLAG_OFF}
s_lshl_b32 s81, s69, 10
s_add_u32 s81, s81, s80
v_mov_b32 v192, 0
v_mov_b32 v193, 1
v_and_b32 v194, 3, v0
v_lshlrev_b32 v194, 10, v194
s_waitcnt vmcnt(0)''')
    stamp(a, 4, 244)
    a(f'''s_mov_b64 exec, 1
buffer_store_dword v193, v192, s[12:15], s81 offen {SC}
s_mov_b64 exec, 15
s_lshl_b32 s81, s69, 16
s_add_u32 s89, s89, s81''')
    a.label('k2_poll')
    a(f'''buffer_load_dword v195, v194, s[12:15], s80 offen {SC}
s_waitcnt vmcnt(0)
v_cmp_ne_u32 vcc, 1, v195
s_nop 3
s_cbranch_vccz k2_nopoll
s_sleep 1
s_branch k2_poll''')
    a.label('k2_nopoll')
    a('s_mov_b64 exec, -1')
    stamp(a, 5, 244)
    for b in range(1, 4):
        a(f's_add_u32 s81, s69, {b}\ns_and_b32 s81, s81, 3\ns_lshl_b32 s81, s81, 14\ns_add_u32 s81, s81, s89')
        t = 168 + 8*(b-1)
        for h in range(2):
            a(f'buffer_load_dwordx4 v[{t+4*h}:{t+4*h+3}], v25, s[12:15], s81 offen offset:{1024*h} {SC}')
    a('s_waitcnt vmcnt(0)')
    stamp(a, 6, 244)
    for nb in range(4):
        for k in range(2*nb, 2*nb+2):
            for b in range(3):
                t = 168 + 8*b + k
                a(f'v_lshlrev_b32 v192, 16, v{t}\nv_and_b32 v193, 0xffff0000, v{t}\nv_add_f32 v{ACCA+2*k}, v{ACCA+2*k}, v192\nv_add_f32 v{ACCA+2*k+1}, v{ACCA+2*k+1}, v193')
        a(f'buffer_store_dwordx4 v[{ACCA+4*nb}:{ACCA+4*nb+3}], v31, s[24:27], 0 offen offset:{64*nb}')
    if STAMP: a('s_waitcnt vmcnt(0)')
    stamp_flush(a, 244, 1, 12, 64)
    a.label('k2_end')
    a('s_endpgm')
```

```python
import re
TRANS = ('v_exp_f32','v_log_f32','v_rcp_f32','v_rsq_f32','v_sqrt_f32','v_sin_f32','v_cos_f32')
def regs_of(tok):
    tok = tok.strip()
    tok = re.sub(r'^-|^abs\(|\)$|^\|', '', tok)
    m = re.fullmatch(r'([vsa])\[(\d+):(\d+)\]', tok)
    if m: return {(m.group(1), k) for k in range(int(m.group(2)), int(m.group(3))+1)}
    m = re.fullmatch(r'([vsa])(\d+)', tok)
    if m: return {(m.group(1), int(m.group(2)))}
    if tok == 'vcc': return {('s', 106), ('s', 107)}
    if tok == 'm0': return {('m', 0)}
    if tok == 'exec': return {('e', 0)}
    return set()
class Ins:
    def __init__(s, text):
        s.text = text
        t = text.split(';')[0].strip()
        p = t.split(None, 1)
        s.op = p[0]
        rest = p[1] if len(p) > 1 else ''
        ops = [o.strip() for o in rest.split(',')]
        if ops:
            ops[-1] = ops[-1].split()[0] if ops[-1] else ''
        s.mods = rest
        s.ops = ops
        op = s.op
        s.mfma = op.startswith('v_mfma')
        s.valu = op.startswith('v_') and not s.mfma
        s.trans = op in TRANS
        s.salu = op.startswith('s_')
        s.vmem = op.startswith('buffer_') or op.startswith('global_')
        s.ds = op.startswith('ds_')
        s.dpp = 'row_' in rest or 'quad_perm' in rest
        s.lds = s.vmem and rest.split()[-1] == 'lds'
        R = [regs_of(o) for o in ops]
        s.w = set(); s.r = set(); s.stdata = set(); s.rc = set()
        if s.mfma:
            s.w = R[0]; s.r = R[1] | R[2] | R[3]; s.rab = R[1] | R[2]; s.rc = R[3]
        elif s.valu:
            if op.startswith('v_cmp'):
                s.w = R[0]; s.r = set().union(*R[1:])
            elif op.startswith('v_permlane') and 'swap' in op:
                s.w = R[0] | R[1]; s.r = R[0] | R[1]
            else:
                s.w = R[0]; s.r = set().union(*R[1:]) if len(R) > 1 else set()
                if op.startswith(('v_fmac', 'v_dot2c', 'v_writelane')) or s.dpp: s.r |= R[0]
                if '_co_' in op: s.w |= R[1]
        elif s.salu:
            if op.startswith(('s_cmp', 's_cbranch', 's_branch', 's_waitcnt', 's_nop', 's_barrier', 's_endpgm', 's_setprio', 's_sleep')):
                s.r = set().union(*R) if R else set()
            else:
                s.w = R[0]; s.r = set().union(*R[1:]) if len(R) > 1 else set()
        elif s.vmem:
            if 'store' in op or 'atomic' in op:
                s.r = set().union(*R)
                if 'x4' in op or 'x3' in op: s.stdata = R[0]
            elif s.lds:
                s.r = set().union(*R) | {('m', 0)}
            elif op in ('buffer_wbl2', 'buffer_inv'):
                pass
            else:
                s.w = R[0]; s.r = set().union(*R[1:])
        elif s.ds:
            if 'write' in op: s.r = set().union(*R)
            else: s.w = R[0]; s.r = set().union(*R[1:])
        s.states = 1
        if op == 's_nop': s.states = int(ops[0]) + 1
def need(p, c):
    n = 0
    vw = {x for x in p.w if x[0] in 'va'}; sw = {x for x in p.w if x[0] == 's'}
    if p.valu:
        if c.mfma and vw & c.r: n = max(n, 2)
        if p.trans and c.valu and not c.trans and vw & c.r: n = max(n, 1)
        if p.trans and (c.vmem or c.ds) and vw & c.r: n = max(n, 1)
        if sw & c.r:
            if c.valu: n = max(n, 4 if 'lane' in c.op else 2)
            if c.vmem: n = max(n, 5)
            if c.salu: n = max(n, 1)
        if vw & c.r:
            if c.op.startswith(('v_readlane', 'v_readfirstlane')): n = max(n, 1)
            if c.dpp or c.op.startswith('v_permlane'): n = max(n, 2)
    if p.mfma:
        if (c.valu or c.vmem or c.ds) and vw & (c.r | c.w): n = max(n, 8)
        if c.mfma:
            if vw & c.rab: n = max(n, 8)
            if vw & c.rc and c.rc != vw: n = max(n, 6)
        if c.valu and p.rc & c.w: n = max(n, 3)
    if p.salu and ('m', 0) in p.w and c.lds: n = max(n, 1)
    if p.stdata & c.w: n = max(n, 2 if c.valu else 1)
    return n
class Asm:
    def __init__(s):
        s.lines = []; s.hist = []
    def raw(s, t):
        s.lines.append(t)
    def label(s, name):
        s.lines.append(name + ':'); s.hist = []
    def __call__(s, text):
        for t in text.strip().split('\n'):
            t = t.strip()
            if not t or t.startswith(';'): continue
            if t.endswith(':'):
                s.label(t[:-1]); continue
            c = Ins(t)
            d = 0; pad = 0
            for p in reversed(s.hist):
                pad = max(pad, need(p, c) - d)
                d += p.states
                if d > 12: break
            if pad > 0:
                nop = Ins('s_nop %d' % (pad - 1)); s.hist.append(nop); s.lines.append('    ' + nop.text)
            s.hist.append(c); s.hist = s.hist[-24:]
            s.lines.append('    ' + t)
    def text(s): return '\n'.join(s.lines) + '\n'
def interleave(mf, fill, start=0, every=1):
    out = []; k = 0
    for n, m in enumerate(mf):
        out.append(m)
        if n >= start and (n - start) % every == 0 and k < len(fill):
            out.append(fill[k]); k += 1
    out += fill[k:]
    return out

import os
STAMP = bool(os.environ.get('STAMP'))
STAMP_OFF = 0x1700000
def stamp(a, k, base):
    if STAMP: a(f'{"s_memrealtime" if os.environ.get("STAMPRT") else "s_memtime"} s[98:99]\ns_waitcnt lgkmcnt(0)\nv_mov_b32 v{base+k}, s98')
def stamp_flush(a, base, kern, srdreg, wavereg, mid=False):
    if not STAMP: return
    if not mid: stamp(a, 7, base)
    a(f"""s_lshl_b32 s98, s2, 3
s_add_u32 s98, s98, s{wavereg}
s_lshl_b32 s98, s98, 5
s_add_u32 s98, s98, {STAMP_OFF + kern*65536}
v_mov_b32 v48, 0
s_mov_b64 exec, 1
buffer_store_dwordx4 v[{base}:{base+3}], v48, s[{srdreg}:{srdreg+3}], s98 offen
buffer_store_dwordx4 v[{base+4}:{base+7}], v48, s[{srdreg}:{srdreg+3}], s98 offen offset:16
s_mov_b64 exec, -1""")
EXP = os.environ.get('EXP', '')
```

```python
from asmlib import *
A2_OFF = 0; A2_SIZE = 8*88*32768
G_OFF = 0x1600000; AGG_OFF = 0x1610000; X_OFF = 0x2000000; FLAG_OFF = 0x1640000; HF_OFF = 0x1690000; HD_OFF = 0x16a0000
WS_SIZE = 268435456
LOG2E = 0x3fb8aa3b; INV2PI = 0x3e22f983
K1_AW = 47104; K1_BU = 0; K1_A0 = 16384; K1_DUMMY = K1_A0 + 3*K1_AW; K1_ESC = K1_DUMMY; K1_CNT = K1_ESC + 4096; K1_LDS = K1_CNT + 256

def srd(a, d, lo, rec, off=0):
    if off:
        a(f's_add_u32 s{d}, s{lo}, {off}\ns_addc_u32 s{d+1}, s{lo+1}, 0')
    else:
        a(f's_mov_b32 s{d}, s{lo}\ns_mov_b32 s{d+1}, s{lo+1}')
    a(f's_mov_b32 s{d+2}, {rec}\ns_mov_b32 s{d+3}, 0x00020000')

def cpow(a, dr, di, a2, th, n, t0, t1):
    a(f'''v_mul_f32 v{t0}, {n}, v{a2}
v_mul_f32 v{t1}, {n}, v{th}
v_exp_f32 v{t0}, v{t0}
v_fract_f32 v{t1}, v{t1}
v_cos_f32 v{dr}, v{t1}
v_sin_f32 v{di}, v{t1}
v_mul_f32 v{dr}, v{dr}, v{t0}
v_mul_f32 v{di}, v{di}, v{t0}''')

def params(a, lre, lim, ldt, a2, th):
    a(f'''v_lshlrev_b32 v{lre}, 16, v{lre}
v_lshlrev_b32 v{lim}, 16, v{lim}
v_lshlrev_b32 v{ldt}, 16, v{ldt}
v_mul_f32 v{ldt}, {LOG2E}, v{ldt}
v_exp_f32 v{ldt}, v{ldt}
v_cvt_pk_bf16_f32 v{ldt}, v{ldt}, v{ldt}
v_lshlrev_b32 v{ldt}, 16, v{ldt}
v_mul_f32 v{a2}, v{ldt}, v{lre}
v_mul_f32 v{th}, v{ldt}, v{lim}
v_mul_f32 v{a2}, {LOG2E}, v{a2}
v_mul_f32 v{th}, {INV2PI}, v{th}''')

SC = os.environ.get('SC', 'sc1')
WT = ' ' + os.environ.get('WT', 'sc1')
ACC = 64; SET = [160, 200]
def k1_frag(st, kind, n):
    base = SET[st] + (0 if kind == 'A' else 16) + 4*n
    return base
def k1_mfmas(st, c):
    nb = 6 if c == 0 else 5
    out = []
    for n in range(nb):
        for b in range(4):
            d = ACC + (n*4 + b)*4
            A = k1_frag(st, 'A', b); B = k1_frag(st, 'B', n)
            if n < 2: x, y = A, B
            else: x, y = B, A
            out.append(f'v_mfma_f32_16x16x32_bf16 v[{d}:{d+3}], v[{x}:{x+3}], v[{y}:{y+3}], v[{d}:{d+3}]')
    return out
def k1_reads(st, c, sub):
    def rdA(b):
        f = k1_frag(st, 'A', b); return f'ds_read_b128 v[{f}:{f+3}], v{50+sub} offset:{b*2048}'
    def rdB(n):
        f = k1_frag(st, 'B', n); return f'ds_read_b128 v[{f}:{f+3}], v{52+sub} offset:{n*2048}'
    def rdW(n, h):
        f = k1_frag(st, 'B', 2+n) + 2*h
        if c == 1 and n == 2: reg, blk = 55, 0
        else: reg, blk = 54, n
        return f'ds_read_b64_tr_b16 v[{f}:{f+1}], v{reg} offset:{sub*7168 + h*1792 + blk*32}'
    out = [rdA(0), rdB(0), rdA(1), rdA(2), rdA(3), rdB(1)]
    for n in range(4 if c == 0 else 3):
        out += [rdW(n, 0), rdW(n, 1)]
    return out
def k1_dma_aw():
    out = []
    for p in range(4):
        out.append(f's_add_u32 m0, s93, s{[73,100,101,78][p]}\ns_nop 0\nbuffer_load_dwordx4 v{1+p}, s[4:7], s70 offen lds')
    out.append(f's_add_u32 m0, s93, s75\ns_add_u32 s70, s70, 128\nbuffer_load_dwordx4 v6, s[12:15], s71 offen lds')
    out.append(f's_mul_i32 s97, s93, s77\ns_add_u32 m0, s97, s76\ns_nop 0\nbuffer_load_dwordx4 v7, s[12:15], s71 offen lds\ns_add_u32 s71, s71, 458752')
    return out
def k1_dma_bu():
    return f's_add_u32 m0, s94, s74\ns_nop 0\nbuffer_load_dwordx4 v5, s[8:11], s72 offen lds\ns_add_u32 s72, s72, 128'
def k1_pf():
    return 'buffer_load_dword v49, v36, s[24:27], s79 offen\ns_add_u32 s79, s79, s92'
def place(mf, early, spread, ph):
    n = len(mf); slots = [[] for _ in range(n)]
    for k, e in enumerate(early): slots[min(k, n-1)].append(e)
    m = len(spread)
    for k, e in enumerate(spread): slots[min(n-1, int((k + ph) * n / m))].append(e)
    out = []
    for k in range(n): out += [mf[k]] + slots[k]
    return out
def weave(seq, ex):
    idx = [k for k, t in enumerate(seq) if t.startswith('v_mfma')]
    if not ex: return seq
    per = -(-len(ex) // len(idx)); out = []; e = 0
    for k, t in enumerate(seq):
        out.append(t)
        if t.startswith('v_mfma'):
            out += ex[e:e+per]; e += per
    return out
NSW = 1 if os.environ.get('SW') else 0
def k1_sweep(a):
    if not NSW: return
    a(f'''s_cmp_eq_u32 s64, 2
s_cselect_b64 s[28:29], s[38:39], s[32:33]
s_cmp_eq_u32 s64, 3
s_cselect_b64 s[28:29], s[40:41], s[28:29]
s_cmp_ge_u32 s64, 4
s_cselect_b64 s[28:29], s[52:53], s[28:29]
s_mov_b32 s30, 4194304
s_cselect_b32 s30, 7340032, s30
s_mov_b32 s31, 0x00020000
s_lshl_b32 s80, s2, 2
s_add_u32 s80, s80, s64
s_sub_u32 s80, s80, 4
s_lshl_b32 s81, s2, 1
s_add_u32 s81, s81, s64
s_cmp_ge_u32 s64, 4
s_cselect_b32 s80, s80, s81
s_and_b32 s81, s64, 6
s_cmp_eq_u32 s81, 2
s_cselect_b32 s80, s2, s80
s_cselect_b32 s30, 2097152, s30
s_lshl_b32 s80, s80, 13
v_lshlrev_b32 v48, 7, v0
buffer_load_dword v49, v48, s[28:31], s80 offen''')
def k1_mw(a):
    a(f'''s_cmp_eq_u32 s64, 5
s_cselect_b64 s[24:25], s[42:43], s[54:55]
s_cmp_eq_u32 s64, 6
s_cselect_b64 s[24:25], s[44:45], s[24:25]
s_mov_b32 s27, 0x00020000
s_mul_i32 s80, s2, 5
s_add_u32 s80, s80, s64
s_lshl_b32 s80, s80, 9
s_lshl_b32 s81, s2, 10
s_cmp_lt_u32 s64, 5
s_cselect_b32 s79, s80, s81
s_mov_b32 s92, 262144
s_cselect_b32 s92, 655360, s92
s_mov_b32 s26, 2097152
s_cselect_b32 s26, 7340032, s26
s_cselect_b32 s80, 3, 4
s_cmp_{'ge' if os.environ.get('NOMW') else 'eq'}_u32 s64, {0 if os.environ.get('NOMW') else 7}
s_cselect_b32 s26, 0, s26
v_lshlrev_b32 v36, s80, v0''')
    k1_sweep(a)
def k1_step(a, c, dma0, dma1, bu, last, vm, first=False, ex=[], mw=False):
    aw = k1_dma_aw()
    if EXP in ('nodma',): dma0 = dma1 = bu = False
    ph = 0.2 if c == 0 else 0.7
    a('s_waitcnt lgkmcnt(0)')
    m0 = k1_mfmas(0, c)
    if first: m0 = [re.sub(r', v\[\d+:\d+\]$', ', 0', m) for m in m0]
    h = len(ex)//2
    for t in weave(place(m0, k1_reads(1, c, 1), (aw + ['\n'.join(k1_small())] if first else aw[3:] if dma0 else []) + ([k1_pf()]*NPF0 if first else []), ph), ex[:h]): a(t)
    if not last:
        a(f's_waitcnt vmcnt({vm}) lgkmcnt(0)\ns_barrier' if EXP != 'novm' else 's_waitcnt lgkmcnt(0)\ns_barrier')
    else:
        a('s_waitcnt lgkmcnt(0)')
    fill = []
    if not last:
        a(f'''s_mov_b32 s93, s96
s_mov_b32 s96, s95
v_add_u32 v50, s95, v8
v_xor_b32 v52, 0x2000, v52
v_add_u32 v54, s95, v12
v_add_u32 v55, s95, v13''')
        fill = k1_reads(0, c, 0)
        fill[0] += '\nv_add_u32 v51, s95, v9\nv_xor_b32 v53, 0x2000, v53'
        fill[2] += f'\ns_add_u32 s95, s95, {K1_AW}\ns_cmp_lt_u32 s95, {3*K1_AW}\ns_cselect_b32 s95, s95, 0'
        if bu: fill[1] += '\n' + k1_dma_bu() + '\ns_xor_b32 s94, s94, 0x2000'
    sp = (aw[:3] if dma1 else []) + ([k1_pf()] if dma1 else [])
    if mw:
        fill[3] += '\ns_mov_b32 s28, s60\ns_mov_b32 s29, s61\ns_mov_b32 s30, 256\ns_mov_b32 s31, 0x00020000\nv_mov_b32 v33, 0'
        fill[5] += f'\nbuffer_load_dword v48, v33, s[28:31], 0 offen {SC}'
    for t in weave(place(k1_mfmas(1, c), fill, sp, ph), ex[h:]): a(t)

PF = int(os.environ.get('PF', '0')); PFD = int(os.environ.get('PFD', '4')); NPF0 = PFD if PF else 0
def k1_pf_setup(a):
    if not PF: return
    a(f'''s_and_b32 s80, s64, 3
s_cmp_eq_u32 s80, 1
s_cselect_b64 s[28:29], s[38:39], s[32:33]
s_cmp_eq_u32 s80, 2
s_cselect_b64 s[28:29], s[40:41], s[28:29]
s_cmp_eq_u32 s80, 3
s_cselect_b64 s[28:29], s[52:53], s[28:29]
s_movk_i32 s92, 128
s_mov_b32 s30, 2097152
s_cselect_b32 s92, 458752, s92
s_cselect_b32 s30, 7340032, s30
s_mov_b32 s31, 0x00020000
s_cmp_eq_u32 s80, 0
s_cselect_b32 s30, 4194304, s30
; x row = 256i + 32(j&7) + l (l<32)
s_lshl_b32 s81, s67, 8
s_and_b32 s82, s68, 7
s_lshl_b32 s82, s82, 5
s_add_u32 s81, s81, s82
; B row = 32j + 8(i&3) + l (l<8)
s_lshl_b32 s82, s68, 5
s_and_b32 s85, s67, 3
s_lshl_b32 s86, s85, 3
s_add_u32 s82, s82, s86
s_cmp_eq_u32 s80, 0
s_cselect_b32 s81, s81, s82
s_cselect_b32 s82, 32, 8
v_add_u32 v48, s81, v0
v_lshlrev_b32 v48, 11, v48
s_lshl_b32 s85, s85, 4
v_lshrrev_b32 v46, 2, v0
v_add_u32 v46, s85, v46
v_mul_u32_u24 v46, 7168, v46
v_and_b32 v47, 3, v0
v_lshl_add_u32 v46, v47, 7, v46
s_and_b32 s85, s84, 0xffffff80
v_add_u32 v46, s85, v46
v_mov_b32 v45, 0x80000000
v_cmp_eq_u32 vcc, 3, v47
v_cndmask_b32 v46, v46, v45, vcc
v_cmp_le_u32 vcc, s82, v0
v_cndmask_b32 v48, v48, v45, vcc
s_cmp_eq_u32 s80, 3
s_cbranch_scc0 k1_pfa
v_mov_b32 v48, v46
k1_pfa:
s_mul_i32 s79, s92, 3
s_cmp_ge_u32 s64, 4
s_cselect_b32 s80, 64, 0
s_add_u32 s79, s79, s80
s_cselect_b32 s30, {'s30' if PF == 2 else '0'}, s30''')

def k1_extra():
    L = []
    def a(t): L.extend([x.strip() for x in t.strip().split('\n') if x.strip()])
    params(a, 27, 28, 29, 42, 43)
    params(a, 30, 31, 32, 44, 45)
    cpow(a, 14, 15, 42, 43, '1.0', 46, 47)
    a('s_mov_b32 s85, 0x41800000\ns_mov_b32 s86, 0x43800000\nv_cvt_f32_u32 v39, v26\nv_mul_f32 v39, s85, v39')
    cpow(a, 16, 17, 42, 43, 's85', 46, 47)
    cpow(a, 18, 19, 42, 43, 's86', 46, 47)
    cpow(a, 20, 21, 42, 43, 'v39', 46, 47)
    cpow(a, 24, 25, 44, 45, 's85', 46, 47)
    a(f'''v_mul_f32 v46, v27, v27
v_fmac_f32 v46, v28, v28
v_rcp_f32 v46, v46
v_add_f32 v47, -1.0, v14
v_mul_f32 v22, v47, v27
v_fmac_f32 v22, v15, v28
v_mul_f32 v23, v15, v27
v_fma_f32 v23, -v47, v28, v23
v_add_f32 v46, v46, v46
v_mul_f32 v22, v22, v46
v_mul_f32 v23, v23, v46''')
    a('v_mov_b32 v40, 0\nv_mov_b32 v41, 0')
    for k in range(8):
        x = 240+k; g = 248+k
        a(f'''v_lshlrev_b32 v42, 16, v{x}
v_and_b32 v43, 0xffff0000, v{x}
v_lshlrev_b32 v44, 16, v{g}
v_and_b32 v45, 0xffff0000, v{g}
v_mul_f32 v42, v42, v44
v_mul_f32 v43, v43, v45
v_cvt_pk_bf16_f32 v42, v42, v43
v_lshlrev_b32 v43, 16, v42
v_and_b32 v42, 0xffff0000, v42
v_add_f32 v40, v40, v43
v_add_f32 v41, v41, v42''')
    a('v_add_f32 v40, v40, v41')
    for m in ['row_shr:1 row_mask:0xf', 'row_shr:2 row_mask:0xf', 'row_shr:4 row_mask:0xf', 'row_shr:8 row_mask:0xf', 'row_bcast:15 row_mask:0xa', 'row_bcast:31 row_mask:0xc']:
        a(f'v_add_f32_dpp v40, v40, v40 {m} bank_mask:0xf')
    a(f'''v_readlane_b32 s85, v40, 63
v_mov_b32 v40, s85
v_cvt_pk_bf16_f32 v40, v40, v40
v_lshlrev_b32 v40, 16, v40
v_mul_f32 v40, {LOG2E | 0x80000000}, v40
v_exp_f32 v40, v40
v_add_f32 v40, 1.0, v40
v_rcp_f32 v40, v40
v_cvt_pk_bf16_f32 v40, v40, v40
v_lshlrev_b32 v40, 16, v40
s_lshl_b32 s85, s87, 2
s_add_u32 s85, s85, {G_OFF}
v_mov_b32 v41, 0
buffer_store_dword v40, v41, s[16:19], s85 offen {SC}''')
    return L

def k1_small():
    L = []
    def a(t): L.append(t.strip())
    a(f'''s_lshl_b32 s85, s67, 8
s_lshl_b32 s87, s68, 3
s_add_u32 s87, s87, s85
s_add_u32 s87, s87, s64
s_lshl_b32 s85, s87, 11
v_lshlrev_b32 v40, 5, v0
buffer_load_dwordx4 v[240:243], v40, s[4:7], s85 offen
buffer_load_dwordx4 v[244:247], v40, s[4:7], s85 offen offset:16
buffer_load_dwordx4 v[248:251], v40, s[20:23], 0 offen
buffer_load_dwordx4 v[252:255], v40, s[20:23], 0 offen offset:16
v_and_b32 v41, 15, v0
v_add_u32 v37, s83, v41
v_lshlrev_b32 v37, 1, v37
v_and_b32 v38, 31, v0
s_lshl_b32 s85, s68, 5
v_add_u32 v38, s85, v38
v_lshlrev_b32 v38, 1, v38''')
    for k, (lo, d) in enumerate([(34, 27), (36, 28), (46, 29)]):
        srd(a, 28, lo, 2048)
        a(f'buffer_load_ushort v{d}, v37, s[28:31], 0 offen\nbuffer_load_ushort v{d+3}, v38, s[28:31], 0 offen\ns_nop 0')
    return L

STEPST = bool(os.environ.get('STEPST'))
_stamp = stamp
def sst(a, k):
    if STEPST: _stamp(a, k, 56)
def stamp(a, k, base):
    if not (STEPST and k >= 2): _stamp(a, k, base)
def gen_k1(a):
    a.label('kf_kernel')
    a(f'''s_cmp_ge_u32 s2, 256
s_cbranch_scc1 k1_end
s_load_dwordx16 s[32:47], s[0:1], 0
s_load_dwordx16 s[48:63], s[0:1], 64
v_lshrrev_b32 v1, 6, v0
v_and_b32 v0, 63, v0
v_readfirstlane_b32 s64, v1
s_and_b32 s78, s2, 7
s_lshr_b32 s79, s2, 3
s_and_b32 s67, s78, 1
s_lshl_b32 s67, s67, 2
s_and_b32 s80, s79, 3
s_add_u32 s67, s67, s80
s_lshr_b32 s68, s78, 1
s_lshl_b32 s68, s68, 3
s_lshr_b32 s80, s79, 2
s_add_u32 s68, s68, s80
s_and_b32 s65, s64, 3
s_lshr_b32 s66, s64, 2
v_lshrrev_b32 v30, 3, v0
v_and_b32 v31, 7, v0
v_and_b32 v32, 15, v0
v_lshrrev_b32 v33, 4, v0
s_lshr_b32 s80, s64, 1
s_lshl_b32 s80, s80, 6
s_and_b32 s81, s64, 1
s_lshl_b32 s82, s81, 3
s_add_u32 s80, s80, s82
s_lshl_b32 s82, s67, 8
s_add_u32 s80, s80, s82
v_lshrrev_b32 v34, 2, v30
v_lshlrev_b32 v34, 4, v34
v_and_b32 v35, 3, v30
v_add3_u32 v34, v34, v35, s80
v_lshlrev_b32 v34, 11, v34
v_lshrrev_b32 v35, 1, v30
v_xor_b32 v35, v35, v31
v_lshl_add_u32 v1, v35, 4, v34
v_xor_b32 v2, 64, v1
v_add_u32 v2, 0x10000, v2
v_add_u32 v3, 0x2000, v1
v_add_u32 v4, 0x2000, v2
s_lshl_b32 s80, s68, 5
s_lshl_b32 s82, s66, 4
s_add_u32 s83, s80, s82
s_lshl_b32 s82, s81, 3
s_add_u32 s82, s82, s83
v_add_u32 v34, s82, v30
v_lshlrev_b32 v34, 11, v34
s_lshl_b32 s82, s81, 2
v_xor_b32 v35, s82, v35
v_lshl_add_u32 v5, v35, 4, v34
; w1 pieces
s_mul_i32 s84, s68, 224
s_lshl_b32 s82, s64, 6
s_movk_i32 s85, 4682
s_movk_i32 s86, 7168''')
    for p in range(2):
        a(f'''v_add_u32 v34, s82, v0
v_mul_lo_u32 v35, v34, s85
v_lshrrev_b32 v35, 16, v35
v_mul_u32_u24 v36, 14, v35
v_sub_u32 v36, v34, v36
v_and_b32 v37, 0x33, v35
v_and_b32 v38, 4, v35
v_lshl_or_b32 v37, v38, 1, v37
v_and_b32 v38, 8, v35
v_lshrrev_b32 v38, 1, v38
v_or_b32 v37, v37, v38
v_mul_lo_u32 v37, v37, s86
v_lshl_add_u32 v37, v36, 4, v37
v_add_u32 v{6+p}, s84, v37
s_add_u32 s82, s82, 512''')
    stamp(a, 0, 56)
    a(f'''v_mov_b32 v35, 0x80000000
v_cmp_lt_u32 vcc, 895, v34
v_cndmask_b32 v7, v7, v35, vcc
s_lshl_b32 s73, s64, 12
s_add_u32 s73, s73, {K1_A0}
s_add_u32 s100, s73, 1024
s_add_u32 s101, s73, 2048
s_add_u32 s78, s73, 3072
s_lshl_b32 s82, s64, 10
s_add_u32 s74, s82, {K1_BU}
s_add_u32 s75, s82, {K1_A0 + 32768}
s_add_u32 s76, s82, {K1_A0 + 40960}
s_sub_u32 s82, s82, 6144
s_add_u32 s82, s82, {K1_DUMMY}
s_cmp_ge_u32 s64, 6
s_cselect_b32 s76, s82, s76
s_cselect_b32 s77, 0, 1
s_mov_b32 s72, 0
s_mov_b32 s70, 0
s_mov_b32 s71, 0
s_waitcnt lgkmcnt(0)''')
    srd(a, 28, 60, 256)
    a(f'''s_or_b32 s80, s2, s64
s_cmp_lg_u32 s80, 0
s_cbranch_scc1 k1_nonon
s_memrealtime s[80:81]
v_mov_b32 v35, 0
s_waitcnt lgkmcnt(0)
s_or_b32 s80, s80, 1
v_mov_b32 v36, s80
s_mov_b64 exec, 1
buffer_store_dword v36, v35, s[28:31], 0 offen {SC}
s_mov_b64 exec, -1
k1_nonon:''')
    srd(a, 4, 32, 4194304)
    a('''s_bitcmp1_b32 s64, 1
s_cselect_b64 s[8:9], s[40:41], s[38:39]
s_mov_b32 s10, 2097152
s_mov_b32 s11, 0x00020000''')
    srd(a, 12, 52, 7340032)
    srd(a, 16, 62, WS_SIZE)
    srd(a, 20, 56, 2048)
    a('s_mov_b32 s93, 0\ns_mov_b32 s94, 0')
    a(k1_dma_bu())
    for t in k1_dma_aw(): a(t)
    a(f's_mov_b32 s93, {K1_AW}\ns_mov_b32 s94, 0x2000')
    a(k1_dma_bu())
    for t in k1_dma_aw(): a(t)
    a(f's_mov_b32 s93, {2*K1_AW}\ns_mov_b32 s94, 0\ns_mov_b32 s96, 0\ns_mov_b32 s95, {K1_AW}')
    k1_pf_setup(a)
    k1_mw(a)
    a(f'''v_and_b32 v37, 15, v0
v_lshrrev_b32 v34, 1, v37
v_xor_b32 v34, v34, v33
v_lshlrev_b32 v34, 4, v34
v_lshl_add_u32 v34, v37, 7, v34
s_lshl_b32 s80, s65, 13
s_add_u32 s80, s80, {K1_A0}
v_add_u32 v8, s80, v34
v_xor_b32 v9, 64, v8
s_lshl_b32 s80, s66, 12
s_add_u32 s80, s80, {K1_BU}
v_add_u32 v10, s80, v34
v_xor_b32 v11, 64, v10
v_lshrrev_b32 v34, 1, v33
v_lshlrev_b32 v34, 4, v34
v_and_b32 v35, 1, v33
v_lshl_add_u32 v34, v35, 2, v34
v_bfe_u32 v35, v0, 2, 2
v_add_u32 v34, v34, v35
v_mul_u32_u24 v34, 224, v34
v_and_b32 v35, 3, v0
v_lshl_add_u32 v34, v35, 3, v34
s_and_b32 s88, s68, 1
s_cmp_eq_u32 s88, 1
s_cselect_b32 s89, 48, 0
s_cselect_b32 s97, 16, 64
s_cselect_b32 s91, 0, 96
s_cmp_eq_u32 s66, 0
s_cselect_b32 s89, s89, s97
s_lshl_b32 s80, s89, 1
s_add_u32 s80, s80, {K1_A0 + 32768}
v_add_u32 v12, s80, v34
s_lshl_b32 s80, s91, 1
s_add_u32 s80, s80, {K1_A0 + 32768}
v_add_u32 v13, s80, v34
s_lshl_b32 s80, s65, 2
v_add_u32 v26, s80, v33''')
    a(f'''v_mov_b32 v50, v8
v_mov_b32 v51, v9
v_mov_b32 v52, v10
v_mov_b32 v53, v11
v_mov_b32 v54, v12
v_mov_b32 v55, v13
v_mov_b32 v34, {K1_CNT}
v_mov_b32 v35, 0
ds_write_b32 v34, v35
s_waitcnt vmcnt({7 + NSW}) lgkmcnt(0)
s_barrier
s_mov_b32 s69, 0
s_cmp_eq_u32 s66, 1
s_cbranch_scc1 k1_c1''')
    for c in range(2):
        if c == 1: a.label('k1_c1')
        stamp(a, 1, 56)
        for t in k1_reads(0, c, 0): a(t)
        V = 7
        k1_step(a, c, True, True, True, False, 16 + NPF0 + NSW, first=True)
        sst(a, 2)
        a.label(f'k1_loop{c}')
        k1_step(a, c, True, True, True, False, V)
        for q, k in ((3, 3), (7, 4)):
            if STEPST:
                a(f's_cmp_lg_u32 s69, {q}\ns_cbranch_scc1 k1_ss{c}{q}'); sst(a, k); a.label(f'k1_ss{c}{q}')
        a(f's_add_u32 s69, s69, 1\ns_cmp_lt_u32 s69, 12\ns_cbranch_scc1 k1_loop{c}')
        ex = k1_extra(); n3 = (len(ex) + 2)//3
        sst(a, 5)
        k1_step(a, c, True, False, True, False, V, ex=ex[:n3])
        k1_step(a, c, False, False, False, False, 0, ex=ex[n3:2*n3], mw=True)
        sst(a, 6)
        k1_step(a, c, False, False, False, True, 0, ex=ex[2*n3:])
        sst(a, 7)
        k1_epi(a, c)

def k1_epi(a, c):
    RE = lambda t: ACC + (t >> 2)*4 + (t & 3)
    IM = lambda t: ACC + 16 + (t >> 2)*4 + (t & 3)
    stamp(a, 2, 56)
    import k2
    a(f'''s_mul_i32 s80, s68, 112
s_add_u32 s81, s80, s89
s_lshr_b32 s81, s81, 5
s_add_u32 s82, s80, s91
s_lshr_b32 s82, s82, 5
s_mul_i32 s83, s67, 88
s_add_u32 s83, s83, 32
s_lshl_b32 s83, s83, 15
s_lshl_b32 s84, s65, 13
s_add_u32 s83, s83, s84
v_lshlrev_b32 v39, 4, v0
v_add_u32 v40, 4096, v39
s_lshl_b32 s84, s88, 3
v_add_u32 v41, s84, v39
v_add_u32 v42, s84, v40
v_lshlrev_b32 v34, 3, v0
s_lshl_b32 s84, s64, 9
s_add_u32 s84, s84, {K1_ESC - 4096}
v_add_u32 v34, s84, v34
v_mov_b32 v36, 0
v_mov_b32 v37, 0
ds_write_b64 v34, v[36:37]''')
    def kfoff(src, dst):
        return f's_lshr_b32 s85, s{src}, 1\ns_lshl_b32 s85, s85, 15\ns_and_b32 s86, s{src}, 1\ns_lshl_b32 s86, s86, 10\ns_add_u32 s85, s85, s86\ns_add_u32 s{dst}, s85, s83\n'
    groups = [(2, 3), (4, 5)] if c == 0 else [(2, 3), (4,)]
    tmp = 192; H = []
    for gi, grp in enumerate(groups):
        for b in range(4):
            x = ''
            if b == 0: x = kfoff(81, 92) + 's_add_u32 s81, s81, 1\n' if len(grp) == 2 else kfoff(82, 92)
            t = tmp + 4*((gi*4 + b) % 8)
            for u, n in enumerate(grp):
                d = ACC + (n*4 + b)*4
                x += f'v_cvt_pk_bf16_f32 v{t+2*u}, v{d}, v{d+1}\nv_cvt_pk_bf16_f32 v{t+2*u+1}, v{d+2}, v{d+3}\n'
            for k in range(2*len(grp)): x += f'v_pk_max_i16 v{t+k}, v{t+k}, 0\n'
            if len(grp) == 2:
                x += f'buffer_store_dwordx4 v[{t}:{t+3}], v{39 + (b >> 1)}, s[16:19], s92 offen offset:{2048*(b & 1)}{WT}'
            else:
                x += f'buffer_store_dwordx2 v[{t}:{t+1}], v{41 + (b >> 1)}, s[16:19], s92 offen offset:{2048*(b & 1)}{WT}'
            H.append(x)
    for t in range(1, 16):
        a(f'''v_fmac_f32 v{RE(t)}, v14, v{RE(t-1)}
v_fmac_f32 v{IM(t)}, v14, v{IM(t-1)}
v_fma_f32 v{RE(t)}, -v15, v{IM(t-1)}, v{RE(t)}
v_fmac_f32 v{IM(t)}, v15, v{RE(t-1)}''')
        if t & 1: a(H[t >> 1])
    a(f'''v_and_b32 v32, 15, v0
v_lshlrev_b32 v34, 8, v26
v_lshl_add_u32 v34, v32, 3, v34
v_mov_b32 v36, v{RE(15)}
v_mov_b32 v37, v{IM(15)}
v_add_u32 v38, {K1_ESC + 128*c - 3840}, v34
v_add_u32 v34, {K1_ESC + 128*c}, v34
ds_write_b64 v34, v[36:37]
s_waitcnt vmcnt(9)''')
    a.label(f'k1_np{c}')
    a(f'''v_readfirstlane_b32 s100, v48
s_cmp_lg_u32 s100, 0
s_cbranch_scc1 k1_nq{c}
s_sleep 4
buffer_load_dword v48, v33, s[28:31], 0 offen {SC}
s_waitcnt vmcnt(0)
s_branch k1_np{c}''')
    a.label(f'k1_nq{c}')
    a(f'''s_waitcnt lgkmcnt(0)
s_barrier''')
    if c == 0:
        a(f'''s_cmp_lg_u32 s64, 0
s_cbranch_scc1 k1_nopub
v_and_b32 v35, 31, v0
v_lshlrev_b32 v35, 3, v35
v_add_u32 v34, {K1_ESC}, v35''')
        for s in range(16): a(f'ds_read_b64 v[{160+2*s}:{161+2*s}], v34 offset:{256*s}')
        srd(a, 20, 62, 131072, AGG_OFF)
        a('v_lshlrev_b32 v35, 1, v35\nv_mov_b32 v192, s100\nv_mov_b32 v193, s100\ns_waitcnt lgkmcnt(0)')
        for s in range(1, 16):
            p = 160+2*(s-1); q = 160+2*s
            a(f'''v_fmac_f32 v{q}, v24, v{p}
v_fmac_f32 v{q+1}, v24, v{p+1}
v_fma_f32 v{q}, -v25, v{p+1}, v{q}
v_fmac_f32 v{q+1}, v25, v{p}''')
        a(f'''s_lshl_b32 s80, s67, 14
s_lshl_b32 s81, s68, 9
s_add_u32 s80, s80, s81
s_mov_b64 exec, 0xffffffff
buffer_store_dwordx4 v[190:193], v35, s[20:23], s80 offen {SC}
s_mov_b64 exec, -1''')
        a.label('k1_nopub')
    stamp(a, 3, 56)
    for s in range(15): a(f'ds_read_b64 v[{160+2*s}:{161+2*s}], v38 offset:{256*s}')
    k2.early(a)
    a('s_waitcnt lgkmcnt(0)')
    for s in range(1, 15):
        q = 160+2*s; p = q-2
        a(f'''v_fmac_f32 v{q}, v16, v{p}
v_fmac_f32 v{q+1}, v16, v{p+1}
v_fma_f32 v{q}, -v17, v{p+1}, v{q}
v_fmac_f32 v{q+1}, v17, v{p}''')
    a('v_mov_b32 v28, v188\nv_mov_b32 v29, v189')
    stamp(a, 4, 56)
    a(f'''v_mov_b32 v44, {K1_CNT}
v_mov_b32 v45, 1
s_mov_b64 exec, 1
s_waitcnt vmcnt(6)
ds_add_rtn_u32 v46, v44, v45
s_lshl_b32 s80, s67, 5
s_add_u32 s80, s80, s68
s_lshl_b32 s101, s80, 7
s_add_u32 s80, s101, {HF_OFF}
v_mov_b32 v44, 0
v_mov_b32 v45, s100
s_waitcnt lgkmcnt(0)
v_readfirstlane_b32 s81, v46
s_cmp_lg_u32 s81, 7
s_cbranch_scc1 k1_nosig{c}
buffer_store_dword v45, v44, s[16:19], s80 offen {SC}''')
    a.label(f'k1_nosig{c}')
    a('s_mov_b64 exec, -1')
    for t in range(16):
        a(f'''v_mul_f32 v44, v22, v{RE(t)}
v_mul_f32 v45, v23, v{RE(t)}
v_fma_f32 v{RE(t)}, -v23, v{IM(t)}, v44
v_fma_f32 v{IM(t)}, -v22, v{IM(t)}, -v45''')
    a('v_mov_b32 v160, v14\nv_mov_b32 v161, v15')
    for t in range(1, 16):
        q = 160+2*t; p = q-2
        a(f'''v_mul_f32 v{q}, v14, v{p}
v_mul_f32 v{q+1}, v14, v{p+1}
v_fma_f32 v{q}, -v15, v{p+1}, v{q}
v_fmac_f32 v{q+1}, v15, v{p}''')
    k2.bases(a)
    srd(a, 20, 62, 131072, AGG_OFF)
    a(f'''s_sub_u32 s80, s67, 7
s_lshl_b32 s80, s80, 14
s_lshl_b32 s81, s68, 9
s_add_u32 s80, s80, s81
s_add_u32 s80, s80, {256*c}
v_lshlrev_b32 v44, 4, v32
v_add_u32 v44, s80, v44
s_lshl_b32 s80, s67, 5
s_lshl_b32 s81, s69, 3
s_add_u32 s80, s80, s81
s_lshl_b32 s80, s80, 7
s_add_u32 s80, s80, {HF_OFF}
v_and_b32 v30, 7, v0
v_lshlrev_b32 v30, 7, v30''')
    stamp(a, 5, 56)
    a(f'''s_mul_i32 s83, s67, 88
s_and_b32 s84, s68, 30
s_add_u32 s83, s83, s84
s_lshl_b32 s83, s83, 15
s_lshl_b32 s84, s65, 13
s_add_u32 s83, s83, s84
s_lshl_b32 s84, s88, 10
s_add_u32 s83, s83, s84
s_add_u32 s84, s83, 32768
v_lshrrev_b32 v33, 4, v0
v_and_b32 v45, 1, v33
v_lshlrev_b32 v45, 2, v45
v_lshrrev_b32 v46, 1, v33
v_lshl_or_b32 v45, v46, 4, v45
v_add_u32 v46, {16*c}, v32
v_xor_b32 v45, v45, v46
v_lshl_add_u32 v45, v33, 5, v45
v_lshlrev_b32 v39, 3, v45
v_add_u32 v40, 4096, v39''')
    a.label(f'k1_hp{c}')
    a('v_mov_b32 v45, v44')
    for u in range(7):
        a(f'buffer_load_dwordx4 v[{192+4*u}:{195+4*u}], v45, s[20:23], 0 offen {SC}\nv_add_u32 v45, 0x4000, v45')
    a(f'buffer_load_dword v31, v30, s[16:19], s80 offen {SC}\ns_waitcnt vmcnt(0)\nv_xor_b32 v31, s100, v31')
    for u in range(7):
        a(f's_cmp_ge_u32 s67, {7-u}\ns_cselect_b32 s81, -1, 0\nv_xor_b32 v45, s100, v{194+4*u}\nv_and_or_b32 v31, v45, s81, v31')
    a(f'''v_cmp_ne_u32 vcc, 0, v31
s_nop 3
s_cbranch_vccz k1_hq{c}
s_sleep {os.environ.get('SLP', '2')}
s_branch k1_hp{c}''')
    a.label(f'k1_hq{c}')
    stamp(a, 6, 56)
    stamp_flush(a, 56, 0, 16, 64, mid=True)
    k2.early_a(a)
    for u in range(1, 7):
        q = 192+4*u; p = q-4
        a(f'''v_fmac_f32 v{q}, v18, v{p}
v_fmac_f32 v{q+1}, v18, v{p+1}
v_fma_f32 v{q}, -v19, v{p+1}, v{q}
v_fmac_f32 v{q+1}, v19, v{p}''')
    a('''v_fmac_f32 v28, v20, v216
v_fmac_f32 v29, v20, v217
v_fma_f32 v28, -v21, v217, v28
v_fmac_f32 v29, v21, v216
v_mul_f32 v46, v22, v28
v_mul_f32 v47, v22, v29
v_fma_f32 v46, -v23, v29, v46
v_fmac_f32 v47, v23, v28''')
    for b in range(4):
        for e in range(4):
            t = 4*b + e; q = 160+2*t
            a(f'''v_fmac_f32 v{RE(t)}, v{q}, v46
v_fma_f32 v{IM(t)}, -v{q}, v47, v{IM(t)}
v_fma_f32 v{RE(t)}, -v{q+1}, v47, v{RE(t)}
v_fma_f32 v{IM(t)}, -v{q+1}, v46, v{IM(t)}''')
        t = 208 + 4*b
        a(f'''v_cvt_pk_bf16_f32 v{t}, v{RE(4*b)}, v{RE(4*b+1)}
v_cvt_pk_bf16_f32 v{t+1}, v{RE(4*b+2)}, v{RE(4*b+3)}
v_cvt_pk_bf16_f32 v{t+2}, v{IM(4*b)}, v{IM(4*b+1)}
v_cvt_pk_bf16_f32 v{t+3}, v{IM(4*b+2)}, v{IM(4*b+3)}
buffer_store_dwordx2 v[{t}:{t+1}], v{39 + (b >> 1)}, s[16:19], s83 offen offset:{2048*(b & 1)}{WT}
buffer_store_dwordx2 v[{t+2}:{t+3}], v{39 + (b >> 1)}, s[16:19], s84 offen offset:{2048*(b & 1)}{WT}''')
    if c == 0: a('s_branch k2_start')
```

```python
from asmlib import *
from k1 import HF_OFF, HD_OFF, srd, A2_SIZE, G_OFF, X_OFF, WS_SIZE, FLAG_OFF, SC
K2_STAGE = 49152; K2_LDS = 3*K2_STAGE
ACCA = 32; ACCB = 96; SET = [160, 192]
def frag(st, kind, n): return SET[st] + (0 if kind == 'A' else 16) + 4*n
def mfmas(st, ty):
    acc = ACCA if ty == 'a' else ACCB
    out = []
    for nb in range(4):
        for b in range(4):
            d = acc + (b*4 + nb)*4
            A = frag(st, 'A', b); B = frag(st, 'B', nb)
            out.append(f'v_mfma_f32_16x16x32_bf16 v[{d}:{d+3}], v[{B}:{B+3}], v[{A}:{A+3}], v[{d}:{d+3}]')
    return out
def reads(st, ty, kf):
    out = []
    if ty == 'a':
        def rA(b):
            f = frag(st, 'A', b)
            return [f'ds_read_b64_tr_b16 v[{f+2*h}:{f+2*h+1}], v{16+h} offset:{b*2048 + kf*1024}' for h in range(2)]
        def rB(n):
            f = frag(st, 'B', n); return [f'ds_read_b128 v[{f}:{f+3}], v{18+kf} offset:{n*2048}']
    else:
        def rA(b):
            f = frag(st, 'A', b); return [f'ds_read_b128 v[{f}:{f+3}], v16 offset:{b*2048 + kf*1024}']
        def rB(n):
            f = frag(st, 'B', n)
            return [f'ds_read_b64_tr_b16 v[{f+2*h}:{f+2*h+1}], v{17+n} offset:{(32*kf + 16*h)*256}' for h in range(2)]
    return rB(0) + rA(0) + rA(1) + rA(2) + rA(3) + rB(1) + rB(2) + rB(3)
def addr_update(ty, sreg):
    if ty == 'a': return [f'v_add_u32 v{16+k}, s{sreg}, v{7+k}' for k in range(4)]
    return [f'v_add_u32 v{16+k}, s{sreg}, v{11+k}' for k in range(5)]
ASC = os.environ.get('ASC', 'sc1')
def dma_setup(kind):
    if kind == 'b':
        return ['s_lshl_b32 s74, s72, 17\ns_add_u32 s74, s74, s79']
    out = []
    if kind == 's':
        out.append('''s_mul_i32 s73, s67, 88
s_lshl_b32 s80, s69, 3
s_add_u32 s73, s73, s80
s_lshl_b32 s73, s73, 15
s_mov_b32 s10, 2097152
v_mov_b32 v3, v5
v_mov_b32 v4, v6''')
    out += ['''s_bitcmp1_b32 s72, 0
s_cselect_b64 s[8:9], s[44:45], s[42:43]
s_lshr_b32 s80, s72, 1
s_lshl_b32 s80, s80, 7
s_add_u32 s74, s80, s97''', '''s_cmp_lt_u32 s72, 22
s_cselect_b32 s10, s10, 0
s_cselect_b32 s6, s6, 0''']
    return out
def dma(sslot):
    out = []
    for p in range(2):
        out.append(f's_add_u32 m0, s{sslot}, s{93+p}\ns_nop 0\nbuffer_load_dwordx4 v{1+p}, s[4:7], s73 offen {ASC} lds')
        out.append(f'buffer_load_dwordx4 v{1+p}, s[4:7], s73 offen offset:1024 {ASC} lds')
    for p in range(2):
        out.append(f's_add_u32 m0, s{sslot}, s{95+p}\ns_nop 0\nbuffer_load_dwordx4 v{3+p}, s[8:11], s74 offen lds')
    out[-1] += '\ns_add_u32 s72, s72, 1\ns_add_u32 s73, s73, 32768'
    return out
from k1 import place
def step(a, cur, nxt, kind, vm='s_waitcnt vmcnt(6) lgkmcnt(0)', first=False, nod0=False, post='', fill1=''):
    dm = dma(77)
    if EXP == 'nodma': dm = ['s_nop 0']*6
    a('s_waitcnt lgkmcnt(0)')
    m0 = mfmas(0, cur)
    if first: m0 = [re.sub(r', v\[\d+:\d+\]$', ', 0', m) for m in m0]
    for t in place(m0, reads(1, cur, 1), [] if nod0 else dm[3:], 0.3): a(t)
    a(vm)
    a('s_barrier')
    for t in addr_update(nxt, 76): a(t)
    if post: a(post)
    rd = reads(0, nxt, 0)
    su = dma_setup(kind)
    rd[0] += f'\ns_mov_b32 s77, s75\ns_mov_b32 s75, s76\ns_add_u32 s76, s76, {K2_STAGE}\ns_cmp_lt_u32 s76, {K2_LDS}\ns_cselect_b32 s76, s76, 0\ns_add_u32 s70, s70, 1'
    for k, t in enumerate(su): rd[1+k] += '\n' + t
    for k, t in enumerate(fill1): rd[min(k, len(rd)-1)] += '\n' + t
    for t in place(mfmas(1, cur), rd, dm[:3], 0.8): a(t)

def early(a):
    a(f'''s_lshr_b32 s69, s68, 3
s_and_b32 s78, s68, 7
s_mul_i32 s79, s69, {14 << 17}
s_lshl_b32 s97, s69, 9
s_sub_u32 s97, s97, 896
v_lshrrev_b32 v7, 3, v0
v_and_b32 v8, 7, v0
v_and_b32 v9, 15, v0
v_lshrrev_b32 v10, 4, v0
s_lshl_b32 s80, s64, 3
v_add_u32 v12, s80, v10
v_lshlrev_b32 v12, 11, v12
s_lshl_b32 s80, s78, 8
v_add_u32 v12, s80, v12
v_lshlrev_b32 v13, 1, v10
v_xor_b32 v13, v13, v9
v_lshl_add_u32 v3, v13, 4, v12
v_xor_b32 v4, 128, v3
v_add_u32 v4, 0x2000, v4
s_lshl_b32 s93, s64, 12
s_add_u32 s94, s93, 2048
s_lshl_b32 s95, s64, 11
s_add_u32 s95, s95, 32768
s_add_u32 s96, s95, 1024''')
    srd(a, 8, 54, 7340032)
    srd(a, 4, 62, A2_SIZE)
    for st in range(3):
        for p in range(2):
            a(f's_add_u32 m0, s{95+p}, {st*K2_STAGE}\ns_add_u32 s74, s79, {st << 17}\nbuffer_load_dwordx4 v{3+p}, s[8:11], s74 offen lds')
    a(f'''v_lshlrev_b32 v11, 4, v0
s_lshr_b32 s80, s64, 1
s_lshl_b32 s80, s80, 2
s_and_b32 s81, s64, 1
s_lshl_b32 s81, s81, 1
s_add_u32 s81, s81, s69
s_and_b32 s82, s81, 3
s_add_u32 s82, s82, s80
s_lshl_b32 s82, s82, 11
v_add_u32 v1, s82, v11
s_add_u32 s81, s81, 1
s_and_b32 s82, s81, 3
s_add_u32 s82, s82, s80
s_lshl_b32 s82, s82, 11
v_add_u32 v2, s82, v11
s_lshl_b32 s80, s78, 7
s_lshl_b32 s81, s64, 4
s_add_u32 s80, s80, s81
v_add_u32 v12, s80, v7
v_lshlrev_b32 v12, 11, v12
v_lshrrev_b32 v13, 1, v7
v_xor_b32 v13, v13, v8
v_lshl_add_u32 v5, v13, 4, v12
v_xor_b32 v6, 64, v5
v_add_u32 v6, 0x4000, v6
s_mul_i32 s73, s67, 88
s_mul_i32 s80, s69, 14
s_add_u32 s73, s73, s80
s_add_u32 s73, s73, 32
s_lshl_b32 s73, s73, 15
s_mov_b32 s70, 0
s_mov_b32 s72, 3
s_mov_b32 s75, 0
s_mov_b32 s76, {K2_STAGE}''')
def early_a(a):
    for st in range(3):
        for p in range(2):
            a(f's_add_u32 m0, s{93+p}, {st*K2_STAGE}\ns_nop 0\nbuffer_load_dwordx4 v{1+p}, s[4:7], s73 offen {ASC} lds')
            a(f'buffer_load_dwordx4 v{1+p}, s[4:7], s73 offen offset:1024 {ASC} lds')
        a('s_add_u32 s73, s73, 32768')

def pre_epi(a):
    srd(a, 12, 62, WS_SIZE)
    srd(a, 16, 32, 4194304)
    srd(a, 20, 48, 2048)
    a(f'''v_lshrrev_b32 v26, 2, v23
v_lshlrev_b32 v26, 4, v26
v_and_b32 v27, 3, v23
s_lshl_b32 s80, s67, 8
s_lshl_b32 s81, s65, 6
s_add_u32 s80, s80, s81
v_add3_u32 v26, v26, v27, s80
v_lshlrev_b32 v27, 2, v26''')
    for b in range(4):
        a(f'''s_add_u32 s81, s69, {b}
s_and_b32 s81, s81, 3
s_lshl_b32 s81, s81, 4
s_add_u32 s81, s81, {G_OFF}
buffer_load_dword v{224+b}, v27, s[12:15], s81 offen {SC}''')
    a(f'''s_lshl_b32 s81, s69, 2
v_add_u32 v26, s81, v26
s_lshl_b32 s80, s78, 7
s_lshl_b32 s81, s66, 6
s_add_u32 s80, s80, s81
v_lshl_add_u32 v27, v24, 2, s80
v_lshlrev_b32 v28, 1, v27
v_lshl_add_u32 v29, v26, 11, v28
v_lshlrev_b32 v31, 2, v27
v_lshl_add_u32 v31, v26, 12, v31''')
    for nb in range(4):
        a(f'buffer_load_dwordx2 v[{228+2*nb}:{229+2*nb}], v29, s[16:19], 0 offen offset:{32*nb}')
        a(f'buffer_load_dwordx2 v[{236+2*nb}:{237+2*nb}], v28, s[20:23], 0 offen offset:{32*nb}')

def bases(a):
    a('v_and_b32 v50, 15, v0\nv_lshrrev_b32 v51, 4, v0\nv_lshlrev_b32 v52, 4, v0')
    a(f'''; a-type bases: hA: rr=(l>>2)&3, cq=l&3, ch=8G+rr(+4h) ; unit = 32cq + (ch ^ (4(cq&1)+16(cq>>1)))
v_bfe_u32 v53, v0, 2, 2
v_and_b32 v54, 3, v0
v_lshl_add_u32 v55, v51, 3, v53
v_and_b32 v34, 1, v54
v_lshlrev_b32 v34, 2, v34
v_lshrrev_b32 v35, 1, v54
v_lshl_or_b32 v34, v35, 4, v34
v_xor_b32 v55, v55, v34
v_lshl_add_u32 v55, v54, 5, v55
v_lshlrev_b32 v55, 3, v55
s_lshl_b32 s80, s65, 13
v_add_u32 v7, s80, v55
v_xor_b32 v8, 32, v7
v_add_u32 v11, s80, v52
v_lshrrev_b32 v55, 1, v50
v_xor_b32 v55, v55, v51
v_lshlrev_b32 v55, 4, v55
v_lshl_add_u32 v55, v50, 7, v55
s_lshl_b32 s80, s66, 13
s_add_u32 s80, s80, 32768
v_add_u32 v9, s80, v55
v_xor_b32 v10, 64, v9
v_lshl_add_u32 v55, v51, 2, v53
v_and_b32 v34, 7, v55
v_lshlrev_b32 v34, 1, v34
s_lshl_b32 s80, s66, 3
v_add_u32 v35, s80, v35
v_xor_b32 v34, v34, v35
v_lshlrev_b32 v34, 4, v34
v_lshl_add_u32 v34, v55, 8, v34
v_and_b32 v35, 1, v54
v_lshl_add_u32 v34, v35, 3, v34
v_add_u32 v12, 32768, v34
v_xor_b32 v13, 32, v12
v_xor_b32 v14, 64, v12
v_xor_b32 v15, 96, v12''')

def gen_k2(a):
    a.label('k2_start')
    a('''v_and_b32 v23, 15, v0
v_lshrrev_b32 v24, 4, v0
v_lshlrev_b32 v25, 4, v0''')
    stamp(a, 0, 244)
    for t in addr_update('b', 75): a(t)
    a('''s_waitcnt vmcnt(16)
s_barrier''')
    stamp(a, 1, 244)
    for t in reads(0, 'b', 0): a(t)
    step(a, 'b', 'b', 'b', vm='s_waitcnt vmcnt(12) lgkmcnt(0)', first=True, nod0=True)
    step(a, 'b', 'b', 'b', vm='s_waitcnt vmcnt(14) lgkmcnt(0)')
    step(a, 'b', 'b', 'b', post=f'''s_cmp_lg_u32 s64, 0
s_cbranch_scc1 k2_nf
s_add_u32 s80, s101, {HD_OFF}
v_mov_b32 v21, 0
v_mov_b32 v22, s100
s_mov_b64 exec, 1
buffer_store_dword v22, v21, s[16:19], s80 offen {SC}
s_mov_b64 exec, -1
k2_nf:''')
    step(a, 'b', 'b', 'b', vm='''s_cmp_eq_u32 s64, 0
s_cbranch_scc1 k2_w7
s_waitcnt vmcnt(6)
k2_w7:
s_waitcnt vmcnt(7) lgkmcnt(0)''')
    a.label('k2_lb')
    step(a, 'b', 'b', 'b')
    a('s_cmp_lt_u32 s70, 10\ns_cbranch_scc1 k2_lb')
    step(a, 'b', 'b', 'b', post=f'''v_and_b32 v21, 31, v0
v_lshlrev_b32 v21, 7, v21
s_lshl_b32 s91, s67, 12
s_add_u32 s91, s91, {HD_OFF}
buffer_load_dword v22, v21, s[16:19], s91 offen {SC}''')
    step(a, 'b', 'b', 's', post=f'''k2_hp:
v_cmp_ne_u32 vcc, s100, v22
s_nop 3
s_cbranch_vccz k2_hq
s_sleep 2
buffer_load_dword v22, v21, s[16:19], s91 offen {SC}
s_waitcnt vmcnt(0)
s_branch k2_hp
k2_hq:''')
    L = []
    pre_epi(lambda t: L.append(t))
    step(a, 'b', 'b', 'a', post='\n'.join(L))
    step(a, 'b', 'a', 'a', vm='s_waitcnt vmcnt(18) lgkmcnt(0)')
    step(a, 'a', 'a', 'a', first=True)
    a.label('k2_la')
    step(a, 'a', 'a', 'a')
    a('s_cmp_lt_u32 s70, 22\ns_cbranch_scc1 k2_la')
    a.label('k2_epi')
    stamp(a, 2, 244)
    srd(a, 24, 58, 8388608)
    a(f'''s_lshl_b32 s80, s67, 3
s_add_u32 s88, s80, s78
s_lshl_b32 s80, s88, 18
s_add_u32 s80, s80, {X_OFF}
s_lshl_b32 s81, s64, 11
s_add_u32 s89, s80, s81
s_lshl_b32 s81, s69, 14
s_add_u32 s90, s89, s81
v_lshlrev_b32 v25, 4, v0
s_waitcnt lgkmcnt(0)''')
    for b in range(4):
        a(f'v_sub_f32 v{164+b}, 1.0, v{224+b}\nv_cvt_pk_bf16_f32 v{164+b}, v{164+b}, v{164+b}\nv_lshlrev_b32 v{164+b}, 16, v{164+b}')
    for b in [1, 2, 3, 0]:
        for k in range(16):
            a(f'v_mul_f32 v{ACCA+16*b+k}, v{ACCA+16*b+k}, v{224+b}\nv_fmac_f32 v{ACCA+16*b+k}, v{ACCB+16*b+k}, v{164+b}')
        if b:
            a(f's_add_u32 s81, s69, {b}\ns_and_b32 s81, s81, 3\ns_lshl_b32 s81, s81, 16\ns_add_u32 s81, s81, s90')
            t = 168 + 8*(b-1)
            for k in range(8): a(f'v_cvt_pk_bf16_f32 v{t+k}, v{ACCA+16*b+2*k}, v{ACCA+16*b+2*k+1}')
            for h in range(2):
                a(f'buffer_store_dwordx4 v[{t+4*h}:{t+4*h+3}], v25, s[12:15], s81 offen offset:{1024*h} {SC}')
    stamp(a, 3, 244)
    for nb in range(4):
        for h in range(2):
            x = 228+2*nb+h; dd = 236+2*nb+h; o = ACCA + 4*nb + 2*h
            a(f'''v_lshlrev_b32 v192, 16, v{x}
v_and_b32 v193, 0xffff0000, v{x}
v_lshlrev_b32 v194, 16, v{dd}
v_and_b32 v195, 0xffff0000, v{dd}
v_mul_f32 v192, v192, v194
v_mul_f32 v193, v193, v195
v_cvt_pk_bf16_f32 v192, v192, v193
v_lshlrev_b32 v193, 16, v192
v_and_b32 v192, 0xffff0000, v192
v_fmac_f32 v{o}, v193, v224
v_fmac_f32 v{o+1}, v192, v224''')
    a(f'''s_lshl_b32 s80, s88, 12
s_lshl_b32 s81, s64, 7
s_add_u32 s80, s80, s81
s_add_u32 s80, s80, {FLAG_OFF}
s_lshl_b32 s81, s69, 10
s_add_u32 s81, s81, s80
v_mov_b32 v192, 0
v_mov_b32 v193, s100
v_and_b32 v194, 3, v0
v_lshlrev_b32 v194, 10, v194
s_waitcnt vmcnt(0)''')
    stamp(a, 4, 244)
    a(f'''s_mov_b64 exec, 1
buffer_store_dword v193, v192, s[12:15], s81 offen {SC}
s_mov_b64 exec, 15
s_lshl_b32 s81, s69, 16
s_add_u32 s89, s89, s81''')
    a.label('k2_poll')
    a(f'''buffer_load_dword v195, v194, s[12:15], s80 offen {SC}
s_waitcnt vmcnt(0)
v_cmp_ne_u32 vcc, s100, v195
s_nop 3
s_cbranch_vccz k2_nopoll
s_sleep 1
s_branch k2_poll''')
    a.label('k2_nopoll')
    a('s_mov_b64 exec, -1')
    stamp(a, 5, 244)
    for b in range(1, 4):
        a(f's_add_u32 s81, s69, {b}\ns_and_b32 s81, s81, 3\ns_lshl_b32 s81, s81, 14\ns_add_u32 s81, s81, s89')
        t = 168 + 8*(b-1)
        for h in range(2):
            a(f'buffer_load_dwordx4 v[{t+4*h}:{t+4*h+3}], v25, s[12:15], s81 offen offset:{1024*h} {SC}')
    a('s_waitcnt vmcnt(0)')
    stamp(a, 6, 244)
    for nb in range(4):
        for k in range(2*nb, 2*nb+2):
            for b in range(3):
                t = 168 + 8*b + k
                a(f'v_lshlrev_b32 v192, 16, v{t}\nv_and_b32 v193, 0xffff0000, v{t}\nv_add_f32 v{ACCA+2*k}, v{ACCA+2*k}, v192\nv_add_f32 v{ACCA+2*k+1}, v{ACCA+2*k+1}, v193')
        a(f'buffer_store_dwordx4 v[{ACCA+4*nb}:{ACCA+4*nb+3}], v31, s[24:27], 0 offen offset:{64*nb}')
    if STAMP: a('s_waitcnt vmcnt(0)')
    stamp_flush(a, 244, 1, 12, 64)
    a.label('k1_end')
    a('s_endpgm')
```

```python
from asmlib import *
A2_OFF = 0; A2_SIZE = 8*88*32768
G_OFF = 0x1600000; AGG_OFF = 0x1610000; X_OFF = 0x2000000; FLAG_OFF = 0x1640000; HF_OFF = 0x1690000; HD_OFF = 0x16a0000
WS_SIZE = 268435456
LOG2E = 0x3fb8aa3b; INV2PI = 0x3e22f983
K1_AW = 47104; K1_BU = 0; K1_A0 = 16384; K1_DUMMY = K1_A0 + 3*K1_AW; K1_ESC = K1_DUMMY; K1_CNT = K1_ESC + 4096; K1_LDS = K1_CNT + 256

def srd(a, d, lo, rec, off=0):
    if off:
        a(f's_add_u32 s{d}, s{lo}, {off}\ns_addc_u32 s{d+1}, s{lo+1}, 0')
    else:
        a(f's_mov_b32 s{d}, s{lo}\ns_mov_b32 s{d+1}, s{lo+1}')
    a(f's_mov_b32 s{d+2}, {rec}\ns_mov_b32 s{d+3}, 0x00020000')

def cpow(a, dr, di, a2, th, n, t0, t1):
    a(f'''v_mul_f32 v{t0}, {n}, v{a2}
v_mul_f32 v{t1}, {n}, v{th}
v_exp_f32 v{t0}, v{t0}
v_fract_f32 v{t1}, v{t1}
v_cos_f32 v{dr}, v{t1}
v_sin_f32 v{di}, v{t1}
v_mul_f32 v{dr}, v{dr}, v{t0}
v_mul_f32 v{di}, v{di}, v{t0}''')

def params(a, lre, lim, ldt, a2, th):
    a(f'''v_lshlrev_b32 v{lre}, 16, v{lre}
v_lshlrev_b32 v{lim}, 16, v{lim}
v_lshlrev_b32 v{ldt}, 16, v{ldt}
v_mul_f32 v{ldt}, {LOG2E}, v{ldt}
v_exp_f32 v{ldt}, v{ldt}
v_cvt_pk_bf16_f32 v{ldt}, v{ldt}, v{ldt}
v_lshlrev_b32 v{ldt}, 16, v{ldt}
v_mul_f32 v{a2}, v{ldt}, v{lre}
v_mul_f32 v{th}, v{ldt}, v{lim}
v_mul_f32 v{a2}, {LOG2E}, v{a2}
v_mul_f32 v{th}, {INV2PI}, v{th}''')

SC = os.environ.get('SC', 'sc1')
NTX = os.environ.get('NTX', ''); NTW = os.environ.get('NTW', ''); NTB = os.environ.get('NTB', ''); NTM = os.environ.get('NTM', '')
WT = ' ' + os.environ.get('WT', 'sc1')
WB = bool(os.environ.get('WB')); WTH = '' if WB else WT
ACC = 64; SET = [160, 200]
def k1_frag(st, kind, n):
    base = SET[st] + (0 if kind == 'A' else 16) + 4*n
    return base
def k1_mfmas(st, c):
    nb = 6 if c == 0 else 5
    out = []
    for n in range(nb):
        for b in range(4):
            d = ACC + (n*4 + b)*4
            A = k1_frag(st, 'A', b); B = k1_frag(st, 'B', n)
            if n < 2: x, y = A, B
            else: x, y = B, A
            out.append(f'v_mfma_f32_16x16x32_bf16 v[{d}:{d+3}], v[{x}:{x+3}], v[{y}:{y+3}], v[{d}:{d+3}]')
    return out
def k1_reads(st, c, sub):
    def rdA(b):
        f = k1_frag(st, 'A', b); return f'ds_read_b128 v[{f}:{f+3}], v{50+sub} offset:{b*2048}'
    def rdB(n):
        f = k1_frag(st, 'B', n); return f'ds_read_b128 v[{f}:{f+3}], v{52+sub} offset:{n*2048}'
    def rdW(n, h):
        f = k1_frag(st, 'B', 2+n) + 2*h
        if c == 1 and n == 2: reg, blk = 55, 0
        else: reg, blk = 54, n
        return f'ds_read_b64_tr_b16 v[{f}:{f+1}], v{reg} offset:{sub*7168 + h*1792 + blk*32}'
    out = [rdA(0), rdB(0), rdA(1), rdA(2), rdA(3), rdB(1)]
    for n in range(4 if c == 0 else 3):
        out += [rdW(n, 0), rdW(n, 1)]
    return out
def k1_dma_aw():
    out = []
    for p in range(4):
        out.append(f's_add_u32 m0, s93, s{[73,100,101,78][p]}\ns_nop 0\nbuffer_load_dwordx4 v{1+p}, s[4:7], s70 offen {NTX} lds')
    out.append(f's_add_u32 m0, s93, s75\ns_add_u32 s70, s70, 128\nbuffer_load_dwordx4 v6, s[12:15], s71 offen {NTW} lds')
    out.append(f's_mul_i32 s97, s93, s77\ns_add_u32 m0, s97, s76\ns_nop 0\nbuffer_load_dwordx4 v7, s[12:15], s71 offen {NTW} lds\ns_add_u32 s71, s71, 458752')
    return out
def k1_dma_bu():
    return f's_add_u32 m0, s94, s74\ns_nop 0\nbuffer_load_dwordx4 v5, s[8:11], s72 offen {NTB} lds\ns_add_u32 s72, s72, 128'
def k1_pf():
    return f'buffer_load_dword v49, v36, s[24:27], s79 offen {NTM}\ns_add_u32 s79, s79, s92'
def place(mf, early, spread, ph):
    n = len(mf); slots = [[] for _ in range(n)]
    for k, e in enumerate(early): slots[min(k, n-1)].append(e)
    m = len(spread)
    for k, e in enumerate(spread): slots[min(n-1, int((k + ph) * n / m))].append(e)
    out = []
    for k in range(n): out += [mf[k]] + slots[k]
    return out
def weave(seq, ex):
    idx = [k for k, t in enumerate(seq) if t.startswith('v_mfma')]
    if not ex: return seq
    per = -(-len(ex) // len(idx)); out = []; e = 0
    for k, t in enumerate(seq):
        out.append(t)
        if t.startswith('v_mfma'):
            out += ex[e:e+per]; e += per
    return out
NSW = 1 if os.environ.get('SW') else 0
def k1_sweep(a):
    if not NSW: return
    a(f'''s_cmp_ge_u32 s64, 4
s_cselect_b64 s[28:29], s[38:39], s[32:33]
s_mov_b32 s30, 4194304
s_cselect_b32 s30, 2097152, s30
s_cselect_b32 s81, 1, 2
s_cselect_b32 s82, 1, 3
s_cmp_ge_u32 s64, 6
s_cselect_b64 s[28:29], s[40:41], s[28:29]
s_mov_b32 s31, 0x00020000
s_lshl_b32 s80, s2, s81
s_and_b32 s82, s82, s64
s_add_u32 s80, s80, s82
s_lshl_b32 s80, s80, 12
v_lshlrev_b32 v48, 6, v0
buffer_load_dword v49, v48, s[28:31], s80 offen''')
MWF = '''s_lshl_b32 s81, s67, 4
s_lshr_b32 s80, s68, 2
s_lshl_b32 s80, s80, 1
s_add_u32 s81, s81, s80
s_and_b32 s80, s68, 1
s_add_u32 s81, s81, s80
s_mul_i32 s80, s81, 5
s_add_u32 s80, s80, s64
s_lshl_b32 s80, s80, 10
s_lshl_b32 s81, s81, 11
s_cmp_lt_u32 s64, 5
s_cselect_b32 s79, s80, s81
s_mov_b32 s92, 262144
s_cselect_b32 s92, 655360, s92
s_mov_b32 s26, 2097152
s_cselect_b32 s26, 7340032, s26
s_cselect_b32 s80, 4, 5
s_cmp_eq_u32 s64, 7
s_cselect_b32 s26, 0, s26
s_add_u32 s81, s68, 1
s_bitcmp1_b32 s81, 1
s_cselect_b32 s26, 0, s26
'''
MWA = '''s_mul_i32 s80, s2, 5
s_add_u32 s80, s80, s64
s_lshl_b32 s80, s80, 9
s_lshl_b32 s81, s2, 10
s_cmp_lt_u32 s64, 5
s_cselect_b32 s79, s80, s81
s_mov_b32 s92, 262144
s_cselect_b32 s92, 655360, s92
s_mov_b32 s26, 2097152
s_cselect_b32 s26, 7340032, s26
s_cselect_b32 s80, 3, 4
s_cmp_eq_u32 s64, 7
s_cselect_b32 s26, 0, s26
'''
ROT = bool(os.environ.get('ROT'))
MWT = os.environ.get('MWT', '1') != '0'
def k1_mwb(a):
    if MWT or os.environ.get('NOMW'): return
    if not ROT:
        a('''s_cmp_ge_u32 s64, 4
s_cselect_b64 s[24:25], s[44:45], s[42:43]
s_mov_b32 s26, 2097152
s_mov_b32 s27, 0x00020000
s_lshr_b32 s80, s101, 5
s_add_u32 s80, s80, s65
s_lshl_b32 s80, s80, 11
v_lshlrev_b32 v36, 5, v0
buffer_load_dword v49, v36, s[24:27], s80 offen''')
        return
    a(f'''s_cmp_eq_u32 s64, 5
s_cselect_b64 s[24:25], s[42:43], s[54:55]
s_cmp_eq_u32 s64, 6
s_cselect_b64 s[24:25], s[44:45], s[24:25]
s_mov_b32 s27, 0x00020000
s_lshr_b32 s81, s101, 7
s_mul_i32 s80, s81, 5
s_add_u32 s80, s80, s64
s_mul_i32 s80, s80, 5760
s_lshl_b32 s81, s81, 13
s_cmp_lt_u32 s64, 5
s_cselect_b32 s80, s80, s81
s_mov_b32 s26, 2097152
s_cselect_b32 s26, 7340032, s26
s_cselect_b32 s81, 45, 64
s_cmp_eq_u32 s64, 7
s_cselect_b32 s26, 0, s26
v_lshlrev_b32 v36, 7, v0
v_add_u32 v36, s80, v36
v_mov_b32 v37, 0x80000000
v_cmp_gt_u32 vcc, s81, v0
v_cndmask_b32 v36, v37, v36, vcc
buffer_load_dword v49, v36, s[24:27], 0 offen''')
def k1_mw(a):
    if not MWT:
        k1_sweep(a); return
    a(f'''s_cmp_eq_u32 s64, 5
s_cselect_b64 s[24:25], s[42:43], s[54:55]
s_cmp_eq_u32 s64, 6
s_cselect_b64 s[24:25], s[44:45], s[24:25]
s_mov_b32 s27, 0x00020000
{MWF if os.environ.get('MWT') == '2' else MWA}v_lshlrev_b32 v36, s80, v0''')
    k1_sweep(a)
def noB(rd):
    out = []
    for t in rd:
        t = '\n'.join(x for x in t.split('\n') if not re.match(r'ds_read_b128 v\[\d+:\d+\], v5[23] ', x))
        if t: out.append(t)
    return out
def k1_step(a, c, dma0, dma1, bu, last, vm, first=False, ex=[], mw=False, ho=False):
    aw = k1_dma_aw()
    if EXP in ('nodma',): dma0 = dma1 = bu = False
    ph = 0.2 if c == 0 else 0.7
    a('s_waitcnt lgkmcnt(0)')
    m0 = k1_mfmas(0, c)
    if first: m0 = [re.sub(r', v\[\d+:\d+\]$', ', 0', m) for m in m0]
    h = len(ex)//2
    if ho: m0 = m0[8:]
    for t in weave(place(m0, noB(k1_reads(1, c, 1)) if ho else k1_reads(1, c, 1), (aw + ['\n'.join(k1_small())] if first else aw[3:] if dma0 else []) + ([k1_pf()]*NPF0 if first else []), ph), ex[:h]): a(t)
    if not last:
        a(f's_waitcnt vmcnt({vm}) lgkmcnt(0)\ns_barrier' if EXP != 'novm' else 's_waitcnt lgkmcnt(0)\ns_barrier')
    else:
        a('s_waitcnt lgkmcnt(0)')
    fill = []
    if not last:
        a(f'''s_mov_b32 s93, s96
s_mov_b32 s96, s95
v_add_u32 v50, s95, v8
v_xor_b32 v52, 0x2000, v52
v_add_u32 v54, s95, v12
v_add_u32 v55, s95, v13''')
        fill = k1_reads(0, c, 0)
        fill[0] += '\nv_add_u32 v51, s95, v9\nv_xor_b32 v53, 0x2000, v53'
        fill[2] += f'\ns_add_u32 s95, s95, {K1_AW}\ns_cmp_lt_u32 s95, {3*K1_AW}\ns_cselect_b32 s95, s95, 0'
        if bu: fill[1] += '\n' + k1_dma_bu() + '\ns_xor_b32 s94, s94, 0x2000'
    sp = (aw[:3] if dma1 else []) + ([k1_pf()] if dma1 and MWT else [])
    if mw:
        fill[3] += '\ns_mov_b32 s28, s60\ns_mov_b32 s29, s61\ns_mov_b32 s30, 256\ns_mov_b32 s31, 0x00020000\nv_mov_b32 v33, 0'
        fill[5] += f'\nbuffer_load_dword v48, v33, s[28:31], 0 offen {SC}'
    if ho: fill = noB(fill)
    for t in weave(place(k1_mfmas(1, c)[8 if ho else 0:], fill, sp, ph), ex[h:]): a(t)

PF = int(os.environ.get('PF', '0')); PFD = int(os.environ.get('PFD', '4')); NPF0 = PFD if PF else 0
def k1_pf_setup(a):
    if not PF: return
    a(f'''s_and_b32 s80, s64, 3
s_cmp_eq_u32 s80, 1
s_cselect_b64 s[28:29], s[38:39], s[32:33]
s_cmp_eq_u32 s80, 2
s_cselect_b64 s[28:29], s[40:41], s[28:29]
s_cmp_eq_u32 s80, 3
s_cselect_b64 s[28:29], s[52:53], s[28:29]
s_movk_i32 s92, 128
s_mov_b32 s30, 2097152
s_cselect_b32 s92, 458752, s92
s_cselect_b32 s30, 7340032, s30
s_mov_b32 s31, 0x00020000
s_cmp_eq_u32 s80, 0
s_cselect_b32 s30, 4194304, s30
; x row = 256i + 32(j&7) + l (l<32)
s_lshl_b32 s81, s67, 8
s_and_b32 s82, s68, 7
s_lshl_b32 s82, s82, 5
s_add_u32 s81, s81, s82
; B row = 32j + 8(i&3) + l (l<8)
s_lshl_b32 s82, s68, 5
s_and_b32 s85, s67, 3
s_lshl_b32 s86, s85, 3
s_add_u32 s82, s82, s86
s_cmp_eq_u32 s80, 0
s_cselect_b32 s81, s81, s82
s_cselect_b32 s82, 32, 8
v_add_u32 v48, s81, v0
v_lshlrev_b32 v48, 11, v48
s_lshl_b32 s85, s85, 4
v_lshrrev_b32 v46, 2, v0
v_add_u32 v46, s85, v46
v_mul_u32_u24 v46, 7168, v46
v_and_b32 v47, 3, v0
v_lshl_add_u32 v46, v47, 7, v46
s_and_b32 s85, s84, 0xffffff80
v_add_u32 v46, s85, v46
v_mov_b32 v45, 0x80000000
v_cmp_eq_u32 vcc, 3, v47
v_cndmask_b32 v46, v46, v45, vcc
v_cmp_le_u32 vcc, s82, v0
v_cndmask_b32 v48, v48, v45, vcc
s_cmp_eq_u32 s80, 3
s_cbranch_scc0 k1_pfa
v_mov_b32 v48, v46
k1_pfa:
s_mul_i32 s79, s92, 3
s_cmp_ge_u32 s64, 4
s_cselect_b32 s80, 64, 0
s_add_u32 s79, s79, s80
s_cselect_b32 s30, {'s30' if PF == 2 else '0'}, s30''')

def k1_hidden(c):
    setup = '''s_mul_i32 s80, s68, 112
s_add_u32 s81, s80, s89
s_lshr_b32 s81, s81, 5
s_add_u32 s82, s80, s91
s_lshr_b32 s82, s82, 5
s_mul_i32 s83, s67, 88
s_add_u32 s83, s83, 32
s_lshl_b32 s83, s83, 15
s_lshl_b32 s84, s65, 13
s_add_u32 s83, s83, s84
v_lshlrev_b32 v1, 4, v0
v_add_u32 v2, 4096, v1
s_lshl_b32 s84, s88, 3
v_add_u32 v3, s84, v1
v_add_u32 v4, s84, v2'''
    def kfoff(src, dst):
        return f's_lshr_b32 s71, s{src}, 1\ns_lshl_b32 s71, s71, 15\ns_and_b32 s72, s{src}, 1\ns_lshl_b32 s72, s72, 10\ns_add_u32 s71, s71, s72\ns_add_u32 s{dst}, s71, s83\n'
    groups = [(2, 3), (4, 5)] if c == 0 else [(2, 3), (4,)]
    H = []
    for gi, grp in enumerate(groups):
        for b in range(4):
            x = ''
            if b == 0: x = kfoff(81, 92) + 's_add_u32 s81, s81, 1\n' if len(grp) == 2 else kfoff(82, 92)
            t = [184, 224][gi] + 4*b
            for u, n in enumerate(grp):
                d = ACC + (n*4 + b)*4
                x += f'v_cvt_pk_bf16_f32 v{t+2*u}, v{d}, v{d+1}\nv_cvt_pk_bf16_f32 v{t+2*u+1}, v{d+2}, v{d+3}\n'
            for k in range(2*len(grp)): x += f'v_pk_max_i16 v{t+k}, v{t+k}, 0\n'
            if len(grp) == 2:
                x += f'buffer_store_dwordx4 v[{t}:{t+3}], v{1 + (b >> 1)}, s[16:19], s92 offen offset:{2048*(b & 1)}{WTH}'
            else:
                x += f'buffer_store_dwordx2 v[{t}:{t+1}], v{3 + (b >> 1)}, s[16:19], s92 offen offset:{2048*(b & 1)}{WTH}'
            H.append(x)
    return setup, H
def k1_last(a, c, ex):
    m = [k1_mfmas(0, c), k1_mfmas(1, c)]
    setup, H = k1_hidden(c)
    def trd(st, ra, rb):
        A = lambda b: f'ds_read_b128 v[{k1_frag(st,"A",b)}:{k1_frag(st,"A",b)+3}], v{ra} offset:{b*2048}'
        B = lambda n: f'ds_read_b128 v[{k1_frag(st,"B",n)}:{k1_frag(st,"B",n)+3}], v{rb} offset:{n*2048}'
        return [A(0), B(0), A(1), A(2), A(3), B(1)]
    rd = noB(k1_reads(1, c, 1))
    rd[-1] += '\n' + setup + f'\nv_add_u32 v5, {2*K1_AW}, v8\nv_add_u32 v6, {2*K1_AW}, v9'
    h = len(ex)//2
    a('s_waitcnt lgkmcnt(0)')
    for t in weave(place(m[0][8:], rd, [], 0), ex[:h]): a(t)
    a('s_waitcnt lgkmcnt(0)')
    for t in weave(place(m[1][8:], trd(0, 5, 10), [], 0), ex[h:]): a(t)
    AG = 240
    srd(a, 20, 62, 131072, AGG_OFF)
    a(f'''s_lshr_b32 s69, s68, 3
s_and_b32 s78, s68, 7
v_and_b32 v32, 15, v0
s_sub_u32 s80, s67, 7
s_lshl_b32 s80, s80, 14
s_lshl_b32 s84, s68, 9
s_add_u32 s80, s80, s84
s_add_u32 s80, s80, {256*c}
v_lshlrev_b32 v27, 4, v32
v_lshrrev_b32 v44, 4, v0
v_lshl_add_u32 v27, v44, 14, v27
v_add_u32 v27, s80, v27
v_add_u32 v252, 0x10000, v27
v_mov_b32 v45, 0x80000000
v_cmp_eq_u32 vcc, 3, v44
v_cndmask_b32 v252, v252, v45, vcc
v_cmp_gt_u32 vcc, 0x20000, v27
v_cndmask_b32 v253, 0, -1, vcc
v_cmp_gt_u32 vcc, 0x20000, v252
v_cndmask_b32 v254, 0, -1, vcc
s_lshl_b32 s80, s67, 5
s_lshl_b32 s84, s69, 3
s_add_u32 s80, s80, s84
s_lshl_b32 s80, s80, 7
s_add_u32 s70, s80, {HF_OFF}
v_and_b32 v30, 7, v0
v_cmp_ne_u32 vcc, s78, v30
{'v_cndmask_b32 v43, 0, -1, vcc' if ROT else 'v_mov_b32 v43, -1'}
v_lshlrev_b32 v30, 7, v30''')
    a(f'buffer_load_dwordx4 v[{AG}:{AG+3}], v27, s[20:23], 0 offen {SC}\nbuffer_load_dwordx4 v[{AG+4}:{AG+7}], v252, s[20:23], 0 offen {SC}\nbuffer_load_dword v31, v30, s[16:19], s70 offen {SC}')
    nxt = [trd(1, 6, 11), trd(0, 50, 52), trd(1, 51, 53), []]
    for g in range(4):
        a('s_waitcnt lgkmcnt(0)')
        for t in place(m[g & 1][:8], nxt[g], H[2*g:2*g+2], 0.5): a(t)

def k1_extra():
    L = []
    def a(t): L.extend([x.strip() for x in t.strip().split('\n') if x.strip()])
    params(a, 27, 28, 29, 42, 43)
    params(a, 30, 31, 32, 44, 45)
    cpow(a, 14, 15, 42, 43, '1.0', 46, 47)
    a('s_mov_b32 s85, 0x41800000\ns_mov_b32 s86, 0x43800000\nv_cvt_f32_u32 v39, v26\nv_mul_f32 v39, s85, v39')
    cpow(a, 16, 17, 42, 43, 's85', 46, 47)
    a('v_lshrrev_b32 v34, 4, v0\nv_sub_u32 v35, 6, v34\nv_cvt_f32_u32 v35, v35\nv_mul_f32 v35, s86, v35')
    cpow(a, 18, 19, 42, 43, 'v35', 46, 47)
    a('v_add_f32 v35, 0xc4800000, v35\nv_max_f32 v37, 0, v35')
    cpow(a, 34, 35, 42, 43, 'v37', 46, 47)
    cpow(a, 20, 21, 42, 43, 'v39', 46, 47)
    cpow(a, 24, 25, 44, 45, 's85', 46, 47)
    a(f'''v_mul_f32 v46, v27, v27
v_fmac_f32 v46, v28, v28
v_rcp_f32 v46, v46
v_add_f32 v47, -1.0, v14
v_mul_f32 v22, v47, v27
v_fmac_f32 v22, v15, v28
v_mul_f32 v23, v15, v27
v_fma_f32 v23, -v47, v28, v23
v_add_f32 v46, v46, v46
v_mul_f32 v22, v22, v46
v_mul_f32 v23, v23, v46''')
    a('v_mov_b32 v40, 0\nv_mov_b32 v41, 0')
    for k in range(8):
        x = 240+k; g = 248+k
        a(f'''v_lshlrev_b32 v42, 16, v{x}
v_and_b32 v43, 0xffff0000, v{x}
v_lshlrev_b32 v44, 16, v{g}
v_and_b32 v45, 0xffff0000, v{g}
v_mul_f32 v42, v42, v44
v_mul_f32 v43, v43, v45
v_cvt_pk_bf16_f32 v42, v42, v43
v_lshlrev_b32 v43, 16, v42
v_and_b32 v42, 0xffff0000, v42
v_add_f32 v40, v40, v43
v_add_f32 v41, v41, v42''')
    a('v_add_f32 v40, v40, v41')
    for m in ['row_shr:1 row_mask:0xf', 'row_shr:2 row_mask:0xf', 'row_shr:4 row_mask:0xf', 'row_shr:8 row_mask:0xf', 'row_bcast:15 row_mask:0xa', 'row_bcast:31 row_mask:0xc']:
        a(f'v_add_f32_dpp v40, v40, v40 {m} bank_mask:0xf')
    a(f'''v_readlane_b32 s85, v40, 63
v_mov_b32 v40, s85
v_cvt_pk_bf16_f32 v40, v40, v40
v_lshlrev_b32 v40, 16, v40
v_mul_f32 v40, {LOG2E | 0x80000000}, v40
v_exp_f32 v40, v40
v_add_f32 v40, 1.0, v40
v_rcp_f32 v40, v40
v_cvt_pk_bf16_f32 v40, v40, v40
v_lshlrev_b32 v40, 16, v40
s_lshl_b32 s85, s87, 2
s_add_u32 s85, s85, {G_OFF}
v_mov_b32 v41, 0
buffer_store_dword v40, v41, s[16:19], s85 offen {SC}''')
    return L

def k1_small():
    L = []
    def a(t): L.append(t.strip())
    a(f'''s_lshl_b32 s85, s67, 8
s_lshl_b32 s87, s68, 3
s_add_u32 s87, s87, s85
s_add_u32 s87, s87, s64
s_lshl_b32 s85, s87, 11
v_lshlrev_b32 v40, 5, v0
buffer_load_dwordx4 v[240:243], v40, s[4:7], s85 offen
buffer_load_dwordx4 v[244:247], v40, s[4:7], s85 offen offset:16
buffer_load_dwordx4 v[248:251], v40, s[20:23], 0 offen
buffer_load_dwordx4 v[252:255], v40, s[20:23], 0 offen offset:16
v_and_b32 v41, 15, v0
v_add_u32 v37, s83, v41
v_lshlrev_b32 v37, 1, v37
v_and_b32 v38, 31, v0
s_lshl_b32 s85, s68, 5
v_add_u32 v38, s85, v38
v_lshlrev_b32 v38, 1, v38''')
    for k, (lo, d) in enumerate([(34, 27), (36, 28), (46, 29)]):
        srd(a, 28, lo, 2048)
        a(f'buffer_load_ushort v{d}, v37, s[28:31], 0 offen\nbuffer_load_ushort v{d+3}, v38, s[28:31], 0 offen\ns_nop 0')
    return L

STEPST = bool(os.environ.get('STEPST'))
_stamp = stamp
def sst(a, k):
    if STEPST: _stamp(a, k, 56)
def stamp(a, k, base):
    if not (STEPST and k >= 2): _stamp(a, k, base)
TK = bool(os.environ.get('TK'))
TK1 = '''s_getreg_b32 s90, hwreg(HW_REG_XCC_ID, 0, 3)
s_cmp_lg_u32 s64, 0
s_cbranch_scc1 k1_notk
s_waitcnt lgkmcnt(0)
s_mov_b32 s28, s60
s_mov_b32 s29, s61
s_mov_b32 s30, 256
s_mov_b32 s31, 0x00020000
s_lshl_b32 s80, s90, 5
v_mov_b32 v40, 8
v_mov_b32 v41, 1
s_mov_b64 exec, 1
buffer_atomic_add v41, v40, s[28:31], s80 offen sc0 sc1
s_mov_b64 exec, -1
k1_notk:
'''
TK2 = '''s_cmp_lg_u32 s64, 0
s_cbranch_scc1 k1_tkd
s_mov_b64 exec, 1
k1_tk:
s_waitcnt vmcnt(0) lgkmcnt(0)
v_readfirstlane_b32 s79, v41
s_cmp_lt_u32 s79, 32
s_cbranch_scc1 k1_tkok
s_add_u32 s90, s90, 1
s_and_b32 s90, s90, 7
s_lshl_b32 s80, s90, 5
s_mov_b32 s28, s60
s_mov_b32 s29, s61
s_mov_b32 s30, 256
s_mov_b32 s31, 0x00020000
v_mov_b32 v40, 8
v_mov_b32 v41, 1
buffer_atomic_add v41, v40, s[28:31], s80 offen sc0 sc1
s_branch k1_tk
k1_tkok:
s_lshl_b32 s79, s79, 3
s_or_b32 s79, s79, s90
v_mov_b32 v40, 0
v_mov_b32 v41, s79
ds_write_b64 v42, v[40:41]
s_mov_b64 exec, -1
k1_tkd:
s_waitcnt lgkmcnt(0)
s_barrier
ds_read_b32 v41, v42 offset:4
s_waitcnt lgkmcnt(0)
v_readfirstlane_b32 s79, v41
'''
NTK2 = '''v_mov_b32 v40, 0
ds_write_b32 v42, v40
s_mov_b32 s79, s2
s_waitcnt lgkmcnt(0)
'''
def gen_k1(a):
    a.label('kf_kernel')
    a(f'''s_cmp_ge_u32 s2, 256
s_cbranch_scc1 k1_end
s_load_dwordx16 s[32:47], s[0:1], 0
s_load_dwordx16 s[48:63], s[0:1], 64
v_lshrrev_b32 v1, 6, v0
v_and_b32 v0, 63, v0
v_readfirstlane_b32 s64, v1
{TK1 if TK else ''}s_and_b32 s65, s64, 3
s_lshr_b32 s66, s64, 2
v_lshrrev_b32 v30, 3, v0
v_and_b32 v31, 7, v0
v_and_b32 v32, 15, v0
v_lshrrev_b32 v33, 4, v0
s_lshr_b32 s80, s64, 1
s_lshl_b32 s80, s80, 6
s_and_b32 s81, s64, 1
s_lshl_b32 s82, s81, 3
s_add_u32 s80, s80, s82
v_lshrrev_b32 v34, 2, v30
v_lshlrev_b32 v34, 4, v34
v_and_b32 v35, 3, v30
v_add3_u32 v34, v34, v35, s80
v_lshlrev_b32 v34, 11, v34
v_lshrrev_b32 v35, 1, v30
v_xor_b32 v35, v35, v31
v_lshl_add_u32 v1, v35, 4, v34
v_xor_b32 v2, 64, v1
v_add_u32 v2, 0x10000, v2
v_add_u32 v3, 0x2000, v1
v_add_u32 v4, 0x2000, v2
s_lshl_b32 s83, s66, 4
s_lshl_b32 s82, s81, 3
s_add_u32 s82, s82, s83
v_add_u32 v34, s82, v30
v_lshlrev_b32 v34, 11, v34
s_lshl_b32 s82, s81, 2
v_xor_b32 v35, s82, v35
v_lshl_add_u32 v5, v35, 4, v34
; w1 pieces
s_lshl_b32 s82, s64, 6
s_movk_i32 s85, 4682
s_movk_i32 s86, 7168''')
    for p in range(2):
        a(f'''v_add_u32 v34, s82, v0
v_mul_lo_u32 v35, v34, s85
v_lshrrev_b32 v35, 16, v35
v_mul_u32_u24 v36, 14, v35
v_sub_u32 v36, v34, v36
v_and_b32 v37, 0x33, v35
v_and_b32 v38, 4, v35
v_lshl_or_b32 v37, v38, 1, v37
v_and_b32 v38, 8, v35
v_lshrrev_b32 v38, 1, v38
v_or_b32 v37, v37, v38
v_mul_lo_u32 v37, v37, s86
v_lshl_add_u32 v{6+p}, v36, 4, v37
s_add_u32 s82, s82, 512''')
    stamp(a, 0, 56)
    a(f'''v_mov_b32 v35, 0x80000000
v_cmp_lt_u32 vcc, 895, v34
v_cndmask_b32 v7, v7, v35, vcc
s_lshl_b32 s73, s64, 12
s_add_u32 s73, s73, {K1_A0}
s_add_u32 s100, s73, 1024
s_add_u32 s101, s73, 2048
s_add_u32 s78, s73, 3072
s_lshl_b32 s82, s64, 10
s_add_u32 s74, s82, {K1_BU}
s_add_u32 s75, s82, {K1_A0 + 32768}
s_add_u32 s76, s82, {K1_A0 + 40960}
s_sub_u32 s82, s82, 6144
s_add_u32 s82, s82, {K1_DUMMY}
s_cmp_ge_u32 s64, 6
s_cselect_b32 s76, s82, s76
s_cselect_b32 s77, 0, 1
v_mov_b32 v42, {K1_CNT}
{TK2 if TK else NTK2}s_and_b32 s80, s79, 7
s_lshr_b32 s79, s79, 3
s_and_b32 s67, s80, 1
s_lshl_b32 s67, s67, 2
s_and_b32 s81, s79, 3
s_add_u32 s67, s67, s81
s_lshr_b32 s68, s80, 1
s_lshl_b32 s68, s68, 3
s_lshr_b32 s81, s79, 2
s_add_u32 s68, s68, s81
s_lshl_b32 s70, s67, 19
s_lshl_b32 s72, s68, 16
s_mul_i32 s71, s68, 224
s_lshl_b32 s81, s68, 5
s_add_u32 s83, s83, s81''')
    srd(a, 28, 60, 256)
    a(f'''s_or_b32 s80, s2, s64
s_cmp_lg_u32 s80, 0
s_cbranch_scc1 k1_nonon
s_memrealtime s[80:81]
v_mov_b32 v35, 0
s_waitcnt lgkmcnt(0)
s_or_b32 s80, s80, 1
v_mov_b32 v36, s80
s_mov_b64 exec, 1
buffer_store_dword v36, v35, s[28:31], 0 offen {SC}
s_mov_b64 exec, -1
k1_nonon:''')
    srd(a, 4, 32, 4194304)
    a('''s_bitcmp1_b32 s64, 1
s_cselect_b64 s[8:9], s[40:41], s[38:39]
s_mov_b32 s10, 2097152
s_mov_b32 s11, 0x00020000''')
    srd(a, 12, 52, 7340032)
    srd(a, 16, 62, WS_SIZE)
    srd(a, 20, 56, 2048)
    a('s_mov_b32 s93, 0\ns_mov_b32 s94, 0')
    a(k1_dma_bu())
    for t in k1_dma_aw(): a(t)
    a(f's_mov_b32 s93, {K1_AW}\ns_mov_b32 s94, 0x2000')
    a(k1_dma_bu())
    for t in k1_dma_aw(): a(t)
    a(f's_mov_b32 s93, {2*K1_AW}\ns_mov_b32 s94, 0\ns_mov_b32 s96, 0\ns_mov_b32 s95, {K1_AW}')
    k1_pf_setup(a)
    k1_mw(a)
    a(f'''v_and_b32 v37, 15, v0
v_lshrrev_b32 v34, 1, v37
v_xor_b32 v34, v34, v33
v_lshlrev_b32 v34, 4, v34
v_lshl_add_u32 v34, v37, 7, v34
s_lshl_b32 s80, s65, 13
s_add_u32 s80, s80, {K1_A0}
v_add_u32 v8, s80, v34
v_xor_b32 v9, 64, v8
s_lshl_b32 s80, s66, 12
s_add_u32 s80, s80, {K1_BU}
v_add_u32 v10, s80, v34
v_xor_b32 v11, 64, v10
v_lshrrev_b32 v34, 1, v33
v_lshlrev_b32 v34, 4, v34
v_and_b32 v35, 1, v33
v_lshl_add_u32 v34, v35, 2, v34
v_bfe_u32 v35, v0, 2, 2
v_add_u32 v34, v34, v35
v_mul_u32_u24 v34, 224, v34
v_and_b32 v35, 3, v0
v_lshl_add_u32 v34, v35, 3, v34
s_and_b32 s88, s68, 1
s_cmp_eq_u32 s88, 1
s_cselect_b32 s89, 48, 0
s_cselect_b32 s97, 16, 64
s_cselect_b32 s91, 0, 96
s_cmp_eq_u32 s66, 0
s_cselect_b32 s89, s89, s97
s_lshl_b32 s80, s89, 1
s_add_u32 s80, s80, {K1_A0 + 32768}
v_add_u32 v12, s80, v34
s_lshl_b32 s80, s91, 1
s_add_u32 s80, s80, {K1_A0 + 32768}
v_add_u32 v13, s80, v34
s_lshl_b32 s80, s65, 2
v_add_u32 v26, s80, v33''')
    a(f'''v_mov_b32 v50, v8
v_mov_b32 v51, v9
v_mov_b32 v52, v10
v_mov_b32 v53, v11
v_mov_b32 v54, v12
v_mov_b32 v55, v13
s_waitcnt vmcnt({7 + NSW}) lgkmcnt(0)
s_barrier
s_mov_b32 s69, 0
s_cmp_eq_u32 s66, 1
s_cbranch_scc1 k1_c1''')
    for c in range(2):
        if c == 1: a.label('k1_c1')
        stamp(a, 1, 56)
        for t in k1_reads(0, c, 0): a(t)
        V = 7 if MWT else 6
        k1_step(a, c, True, True, True, False, 16 + NPF0 + NSW, first=True)
        sst(a, 2)
        a.label(f'k1_loop{c}')
        k1_step(a, c, True, True, True, False, V)
        for q, k in ((3, 3), (7, 4)):
            if STEPST:
                a(f's_cmp_lg_u32 s69, {q}\ns_cbranch_scc1 k1_ss{c}{q}'); sst(a, k); a.label(f'k1_ss{c}{q}')
        a(f's_add_u32 s69, s69, 1\ns_cmp_lt_u32 s69, 12\ns_cbranch_scc1 k1_loop{c}')
        ex = k1_extra(); n3 = (len(ex) + 2)//3
        sst(a, 5)
        k1_step(a, c, True, False, True, False, V, ex=ex[:n3])
        k1_step(a, c, False, False, False, False, 0, ex=ex[n3:2*n3], mw=True, ho=True)
        sst(a, 6)
        k1_last(a, c, ex[2*n3:])
        sst(a, 7)
        k1_epi(a, c)

SIGE = not os.environ.get('SIGL')
def sigf(a, c):
    W = ('s_waitcnt vmcnt(0)' if c else 's_cmp_eq_u32 s64, 0\ns_cbranch_scc1 k1_w1\ns_waitcnt vmcnt(0)\nk1_w1:\ns_waitcnt vmcnt(1)') if SIGE else f's_cmp_eq_u32 s82, 1\ns_cbranch_scc1 k1_w18{c}\ns_waitcnt vmcnt(6)\nk1_w18{c}:\ns_waitcnt vmcnt(14)'
    stamp(a, 4, 56)
    a(f'''v_mov_b32 v44, {K1_CNT}
v_mov_b32 v45, 1
s_mov_b64 exec, 1
{W}
ds_add_rtn_u32 v46, v44, v45
s_lshl_b32 s80, s67, 5
s_add_u32 s80, s80, s68
s_lshl_b32 s101, s80, 7
s_add_u32 s80, s101, {HF_OFF}
v_mov_b32 v44, 0
v_mov_b32 v45, s100
s_waitcnt lgkmcnt(0)
v_readfirstlane_b32 s81, v46
s_cmp_lg_u32 s81, 7
s_cbranch_scc1 k1_nosig{c}
{'buffer_wbl2 sc1' if WB else ''}
{'s_waitcnt vmcnt(0)' if WB else ''}
buffer_store_dword v45, v44, s[16:19], s80 offen {SC}''')
    a.label(f'k1_nosig{c}')
    a('s_mov_b64 exec, -1')
def k1_epi(a, c):
    RE = lambda t: ACC + (t >> 2)*4 + (t & 3)
    IM = lambda t: ACC + 16 + (t >> 2)*4 + (t & 3)
    stamp(a, 2, 56)
    import k2
    AG = 240
    def agl():
        a(f'buffer_load_dwordx4 v[{AG}:{AG+3}], v27, s[20:23], 0 offen {SC}\nbuffer_load_dwordx4 v[{AG+4}:{AG+7}], v252, s[20:23], 0 offen {SC}')
    def hfl(): a(f'buffer_load_dword v31, v30, s[16:19], s70 offen {SC}')
    def hfc(): a('v_xor_b32 v31, s100, v31\nv_and_b32 v31, v31, v43\nv_cmp_ne_u32 vcc, 0, v31\ns_nop 3')
    def agc():
        a(f'''v_xor_b32 v44, s100, v{AG+2}
v_xor_b32 v45, s100, v{AG+6}
v_and_b32 v44, v44, v253
v_and_or_b32 v44, v45, v254, v44
v_cmp_ne_u32 vcc, 0, v44
s_nop 3''')
    def polls(): agl(); hfl()
    a(f'''v_lshlrev_b32 v46, 3, v0
s_lshl_b32 s84, s64, 9
s_add_u32 s84, s84, {K1_ESC - 4096}
v_add_u32 v46, s84, v46
v_mov_b32 v36, 0
v_mov_b32 v37, 0
ds_write_b64 v46, v[36:37]''')
    for t in range(1, 16):
        a(f'''v_fmac_f32 v{RE(t)}, v14, v{RE(t-1)}
v_fmac_f32 v{IM(t)}, v14, v{IM(t-1)}
v_fma_f32 v{RE(t)}, -v15, v{IM(t-1)}, v{RE(t)}
v_fmac_f32 v{IM(t)}, v15, v{RE(t-1)}''')
    a(f'''v_lshlrev_b32 v46, 8, v26
v_lshl_add_u32 v46, v32, 3, v46
v_mov_b32 v36, v{RE(15)}
v_mov_b32 v37, v{IM(15)}
v_add_u32 v38, {K1_ESC + 128*c - 3840}, v46
v_add_u32 v46, {K1_ESC + 128*c}, v46
ds_write_b64 v46, v[36:37]
s_waitcnt vmcnt(12)''')
    a.label(f'k1_np{c}')
    a(f'''v_readfirstlane_b32 s100, v48
s_cmp_lg_u32 s100, 0
s_cbranch_scc1 k1_nq{c}
s_sleep 4
buffer_load_dword v48, v33, s[28:31], 0 offen {SC}
s_waitcnt vmcnt(0)
s_branch k1_np{c}''')
    a.label(f'k1_nq{c}')
    a(f'''s_waitcnt lgkmcnt(0)
s_barrier''')
    if c == 0:
        a(f'''s_cmp_lg_u32 s64, 0
s_cbranch_scc1 k1_nopub
v_and_b32 v47, 31, v0
v_lshlrev_b32 v47, 3, v47
v_add_u32 v46, {K1_ESC}, v47''')
        for s in range(16): a(f'ds_read_b64 v[{160+2*s}:{161+2*s}], v46 offset:{256*s}')
        a('v_lshlrev_b32 v47, 1, v47\nv_mov_b32 v192, s100\nv_mov_b32 v193, s100\ns_waitcnt lgkmcnt(0)')
        for s in range(1, 16):
            p = 160+2*(s-1); q = 160+2*s
            a(f'''v_fmac_f32 v{q}, v24, v{p}
v_fmac_f32 v{q+1}, v24, v{p+1}
v_fma_f32 v{q}, -v25, v{p+1}, v{q}
v_fmac_f32 v{q+1}, v25, v{p}''')
        a(f'''s_lshl_b32 s80, s67, 14
s_lshl_b32 s81, s68, 9
s_add_u32 s80, s80, s81
s_mov_b64 exec, 0xffffffff
buffer_store_dwordx4 v[190:193], v47, s[20:23], s80 offen {SC}
s_mov_b64 exec, -1''')
        a.label('k1_nopub')
    stamp(a, 3, 56)
    for s in range(15): a(f'ds_read_b64 v[{160+2*s}:{161+2*s}], v38 offset:{256*s}')
    if SIGE:
        sigf(a, c)
    k2.early(a)
    if not SIGE: a('s_waitcnt vmcnt(14)')
    agc()
    a('s_cmp_eq_u64 vcc, 0\ns_cselect_b32 s77, 1, 0\ns_mov_b32 s82, 0')
    hfc()
    a(f's_cbranch_vccnz k1_slow{c}\ns_mov_b32 s82, 1')
    k2.early_a(a, [0, 1])
    a.label(f'k1_slow{c}')
    if not SIGE: sigf(a, c)
    k1_mwb(a)
    a(f's_cmp_eq_u32 s77, 1\ns_cbranch_scc1 k1_ag1{c}')
    agl()
    a.label(f'k1_ag1{c}')
    for s in range(1, 15):
        q = 160+2*s; p = q-2
        a(f'''v_fmac_f32 v{q}, v16, v{p}
v_fmac_f32 v{q+1}, v16, v{p+1}
v_fma_f32 v{q}, -v17, v{p+1}, v{q}
v_fmac_f32 v{q+1}, v17, v{p}''')
    a('v_mov_b32 v28, v188\nv_mov_b32 v29, v189')
    for t in range(16):
        a(f'''v_mul_f32 v44, v22, v{RE(t)}
v_mul_f32 v45, v23, v{RE(t)}
v_fma_f32 v{RE(t)}, -v23, v{IM(t)}, v44
v_fma_f32 v{IM(t)}, -v22, v{IM(t)}, -v45''')
    a(f's_cmp_eq_u32 s82, 1\ns_cbranch_scc1 k1_hf1{c}')
    hfl()
    a.label(f'k1_hf1{c}')
    a('v_mov_b32 v160, v14\nv_mov_b32 v161, v15')
    for t in range(1, 16):
        q = 160+2*t; p = q-2
        a(f'''v_mul_f32 v{q}, v14, v{p}
v_mul_f32 v{q+1}, v14, v{p+1}
v_fma_f32 v{q}, -v15, v{p+1}, v{q}
v_fmac_f32 v{q+1}, v15, v{p}''')
    k2.bases(a)
    stamp(a, 5, 56)
    a(f'''s_mul_i32 s83, s67, 88
s_and_b32 s84, s68, 30
s_add_u32 s83, s83, s84
s_lshl_b32 s83, s83, 15
s_lshl_b32 s84, s65, 13
s_add_u32 s83, s83, s84
s_lshl_b32 s84, s88, 10
s_add_u32 s83, s83, s84
s_add_u32 s84, s83, 32768
v_lshrrev_b32 v33, 4, v0
v_and_b32 v45, 1, v33
v_lshlrev_b32 v45, 2, v45
v_lshrrev_b32 v46, 1, v33
v_lshl_or_b32 v45, v46, 4, v45
v_add_u32 v46, {16*c}, v32
v_xor_b32 v45, v45, v46
v_lshl_add_u32 v45, v33, 5, v45
v_lshlrev_b32 v39, 3, v45
v_add_u32 v40, 4096, v39''')
    a(f's_cmp_eq_u32 s82, 1\ns_cbranch_scc1 k1_fast{c}')
    a.label(f'k1_hp{c}')
    a('s_waitcnt vmcnt(0)')
    hfc()
    a(f's_cbranch_vccz k1_hq{c}\ns_sleep {os.environ.get("SLP", "1")}')
    hfl()
    a(f's_branch k1_hp{c}')
    a.label(f'k1_hq{c}')
    stamp(a, 6, 56)
    k2.early_a(a, [0])
    a(f's_cmp_eq_u32 s77, 1\ns_cbranch_scc1 k1_adone{c}\ns_branch k1_agc{c}')
    a.label(f'k1_fast{c}')
    stamp(a, 6, 56)
    a(f's_cmp_eq_u32 s77, 1\ns_cbranch_scc1 k1_adone{c}')
    a.label(f'k1_agw{c}')
    a('s_waitcnt vmcnt(0)')
    a.label(f'k1_agc{c}')
    agc()
    a(f's_cbranch_vccz k1_adone{c}\ns_sleep 1')
    agl()
    a(f's_branch k1_agw{c}')
    a.label(f'k1_adone{c}')
    stamp(a, 7, 56)
    a(f'''v_mul_f32 v248, v18, v{AG}
v_mul_f32 v249, v18, v{AG+1}
v_fma_f32 v248, -v19, v{AG+1}, v248
v_fmac_f32 v249, v19, v{AG}
v_fmac_f32 v248, v34, v{AG+4}
v_fmac_f32 v249, v34, v{AG+5}
v_fma_f32 v248, -v35, v{AG+5}, v248
v_fmac_f32 v249, v35, v{AG+4}
v_mov_b32 v250, v248
v_mov_b32 v251, v249
v_permlane32_swap_b32 v248, v250
v_permlane32_swap_b32 v249, v251
v_add_f32 v248, v248, v250
v_add_f32 v249, v249, v251
v_mov_b32 v250, v248
v_mov_b32 v251, v249
v_permlane16_swap_b32 v248, v250
v_permlane16_swap_b32 v249, v251
v_add_f32 v248, v248, v250
v_add_f32 v249, v249, v251''')
    a('''v_fmac_f32 v28, v20, v248
v_fmac_f32 v29, v20, v249
v_fma_f32 v28, -v21, v249, v28
v_fmac_f32 v29, v21, v248
v_mul_f32 v46, v22, v28
v_mul_f32 v47, v22, v29
v_fma_f32 v46, -v23, v29, v46
v_fmac_f32 v47, v23, v28''')
    for b in range(4):
        for e in range(4):
            t = 4*b + e; q = 160+2*t
            a(f'''v_fmac_f32 v{RE(t)}, v{q}, v46
v_fma_f32 v{IM(t)}, -v{q}, v47, v{IM(t)}
v_fma_f32 v{RE(t)}, -v{q+1}, v47, v{RE(t)}
v_fma_f32 v{IM(t)}, -v{q+1}, v46, v{IM(t)}''')
    a('s_cmp_eq_u32 s82, 1\ns_cbranch_scc1 k2_start')
    k2.early_a(a, [1])
    if c == 0: a('s_branch k2_start')

def hstores():
    RE = lambda t: ACC + t
    IM = lambda t: ACC + 16 + t
    out = []
    for b in range(4):
        t = 224 + 4*b
        out.append(f'''v_cvt_pk_bf16_f32 v{t}, v{RE(4*b)}, v{RE(4*b+1)}
v_cvt_pk_bf16_f32 v{t+1}, v{RE(4*b+2)}, v{RE(4*b+3)}
buffer_store_dwordx2 v[{t}:{t+1}], v{39 + (b >> 1)}, s[16:19], s83 offen offset:{2048*(b & 1)}{WT}''')
        out.append(f'''v_cvt_pk_bf16_f32 v{t+2}, v{IM(4*b)}, v{IM(4*b+1)}
v_cvt_pk_bf16_f32 v{t+3}, v{IM(4*b+2)}, v{IM(4*b+3)}
buffer_store_dwordx2 v[{t+2}:{t+3}], v{39 + (b >> 1)}, s[16:19], s84 offen offset:{2048*(b & 1)}{WT}''')
    return out
```

```python
from asmlib import *
from k1 import ROT, HF_OFF, HD_OFF, srd, A2_SIZE, G_OFF, X_OFF, WS_SIZE, FLAG_OFF, SC
K2_STAGE = 49152; K2_LDS = 3*K2_STAGE
ACCA = 32; ACCB = 96; SET = [160, 192]
def frag(st, kind, n): return SET[st] + (0 if kind == 'A' else 16) + 4*n
def mfmas(st, ty):
    acc = ACCA if ty == 'a' else ACCB
    out = []
    for nb in range(4):
        for b in range(4):
            d = acc + (b*4 + nb)*4
            A = frag(st, 'A', b); B = frag(st, 'B', nb)
            out.append(f'v_mfma_f32_16x16x32_bf16 v[{d}:{d+3}], v[{B}:{B+3}], v[{A}:{A+3}], v[{d}:{d+3}]')
    return out
def reads(st, ty, kf):
    out = []
    if ty == 'a':
        def rA(b):
            f = frag(st, 'A', b)
            return [f'ds_read_b64_tr_b16 v[{f+2*h}:{f+2*h+1}], v{16+h} offset:{b*2048 + kf*1024}' for h in range(2)]
        def rB(n):
            f = frag(st, 'B', n); return [f'ds_read_b128 v[{f}:{f+3}], v{18+kf} offset:{n*2048}']
    else:
        def rA(b):
            f = frag(st, 'A', b); return [f'ds_read_b128 v[{f}:{f+3}], v16 offset:{b*2048 + kf*1024}']
        def rB(n):
            f = frag(st, 'B', n)
            return [f'ds_read_b64_tr_b16 v[{f+2*h}:{f+2*h+1}], v{17+n} offset:{(32*kf + 16*h)*256}' for h in range(2)]
    return rB(0) + rA(0) + rA(1) + rA(2) + rA(3) + rB(1) + rB(2) + rB(3)
def addr_update(ty, sreg):
    if ty == 'a': return [f'v_add_u32 v{16+k}, s{sreg}, v{7+k}' for k in range(4)]
    return [f'v_add_u32 v{16+k}, s{sreg}, v{11+k}' for k in range(5)]
ASC = os.environ.get('ASC', 'sc1')
def dma_setup(kind):
    if kind == 'b':
        return ['s_lshl_b32 s74, s71, 17\ns_add_u32 s74, s74, s79\ns_lshl_b32 s73, s71, 15\ns_add_u32 s73, s73, s90',
                's_add_u32 s71, s71, 1\ns_cmp_eq_u32 s71, 14\ns_cselect_b32 s71, 0, s71']
    out = []
    if kind == 's':
        out.append('''s_mul_i32 s73, s67, 88
s_lshl_b32 s80, s69, 3
s_add_u32 s73, s73, s80
s_lshl_b32 s73, s73, 15
s_mov_b32 s10, 2097152
v_mov_b32 v3, v5
v_mov_b32 v4, v6''')
    out += ['''s_bitcmp1_b32 s72, 0
s_cselect_b64 s[8:9], s[44:45], s[42:43]
s_lshr_b32 s80, s72, 1
s_lshl_b32 s80, s80, 7
s_add_u32 s74, s80, s97''']
    return out
def dma(sslot):
    out = []
    for p in range(2):
        out.append(f's_add_u32 m0, s{sslot}, s{93+p}\ns_nop 0\nbuffer_load_dwordx4 v{1+p}, s[4:7], s73 offen {ASC} lds')
        out.append(f'buffer_load_dwordx4 v{1+p}, s[4:7], s73 offen offset:1024 {ASC} lds')
    for p in range(2):
        out.append(f's_add_u32 m0, s{sslot}, s{95+p}\ns_nop 0\nbuffer_load_dwordx4 v{3+p}, s[8:11], s74 offen lds')
    out[-1] += '\ns_add_u32 s72, s72, 1\ns_add_u32 s73, s73, 32768'
    return out
from k1 import place, hstores
def step(a, cur, nxt, kind, vm='s_waitcnt vmcnt(6) lgkmcnt(0)', first=False, nod0=False, post='', fill1='', d0=True, d1=True, bar=True):
    dm = dma(77)
    if EXP == 'nodma': dm = ['s_nop 0']*6
    a('s_waitcnt lgkmcnt(0)')
    m0 = mfmas(0, cur)
    if first: m0 = [re.sub(r', v\[\d+:\d+\]$', ', 0', m) for m in m0]
    for t in place(m0, reads(1, cur, 1), adma(2) + hstores() if nod0 else dm[3:] if d0 else [], 0.3): a(t)
    a(vm)
    if bar: a('s_barrier')
    if nxt is None:
        for t in mfmas(1, cur): a(t)
        return
    for t in addr_update(nxt, 76): a(t)
    if post: a(post)
    rd = reads(0, nxt, 0)
    su = dma_setup(kind) if d1 else []
    rd[0] += f'\ns_mov_b32 s77, s75\ns_mov_b32 s75, s76\ns_add_u32 s76, s76, {K2_STAGE}\ns_cmp_lt_u32 s76, {K2_LDS}\ns_cselect_b32 s76, s76, 0\ns_add_u32 s70, s70, 1'
    for k, t in enumerate(su): rd[1+k] += '\n' + t
    for k, t in enumerate(fill1): rd[min(k, len(rd)-1)] += '\n' + t
    for t in place(mfmas(1, cur), rd, dm[:3] if d1 else [], 0.8): a(t)

def early(a):
    a(f'''s_mul_i32 s71, s78, 112
s_add_u32 s71, s71, 175
s_lshr_b32 s71, s71, 6
{'' if ROT else 's_mov_b32 s71, 0'}
s_cmp_eq_u32 s71, 14
s_cselect_b32 s85, 0, s71
s_add_u32 s86, s85, 1
s_cmp_eq_u32 s86, 14
s_cselect_b32 s86, 0, s86
s_add_u32 s87, s86, 1
s_cmp_eq_u32 s87, 14
s_cselect_b32 s87, 0, s87
s_add_u32 s71, s87, 1
s_cmp_eq_u32 s71, 14
s_cselect_b32 s71, 0, s71
s_mul_i32 s79, s69, {14 << 17}
s_lshl_b32 s97, s69, 9
s_sub_u32 s97, s97, 896
v_lshrrev_b32 v7, 3, v0
v_and_b32 v8, 7, v0
v_and_b32 v9, 15, v0
v_lshrrev_b32 v10, 4, v0
s_lshl_b32 s80, s64, 3
v_add_u32 v12, s80, v10
v_lshlrev_b32 v12, 11, v12
s_lshl_b32 s80, s78, 8
v_add_u32 v12, s80, v12
v_lshlrev_b32 v13, 1, v10
v_xor_b32 v13, v13, v9
v_lshl_add_u32 v3, v13, 4, v12
v_xor_b32 v4, 128, v3
v_add_u32 v4, 0x2000, v4
s_lshl_b32 s93, s64, 12
s_add_u32 s94, s93, 2048
s_lshl_b32 s95, s64, 11
s_add_u32 s95, s95, 32768
s_add_u32 s96, s95, 1024''')
    srd(a, 8, 54, 7340032)
    srd(a, 4, 62, A2_SIZE)
    for st in range(3):
        for p in range(2):
            a(f's_lshl_b32 s74, s{85+st}, 17\ns_add_u32 m0, s{95+p}, {st*K2_STAGE}\ns_add_u32 s74, s74, s79\nbuffer_load_dwordx4 v{3+p}, s[8:11], s74 offen lds')
    a(f'''v_lshlrev_b32 v11, 4, v0
s_lshr_b32 s80, s64, 1
s_lshl_b32 s80, s80, 2
s_and_b32 s81, s64, 1
s_lshl_b32 s81, s81, 1
s_add_u32 s81, s81, s69
s_and_b32 s82, s81, 3
s_add_u32 s82, s82, s80
s_lshl_b32 s82, s82, 11
v_add_u32 v1, s82, v11
s_add_u32 s81, s81, 1
s_and_b32 s82, s81, 3
s_add_u32 s82, s82, s80
s_lshl_b32 s82, s82, 11
v_add_u32 v2, s82, v11
s_lshl_b32 s80, s78, 7
s_lshl_b32 s81, s64, 4
s_add_u32 s80, s80, s81
v_add_u32 v12, s80, v7
v_lshlrev_b32 v12, 11, v12
v_lshrrev_b32 v13, 1, v7
v_xor_b32 v13, v13, v8
v_lshl_add_u32 v5, v13, 4, v12
v_xor_b32 v6, 64, v5
v_add_u32 v6, 0x4000, v6
s_mul_i32 s73, s67, 88
s_mul_i32 s80, s69, 14
s_add_u32 s73, s73, s80
s_add_u32 s73, s73, 32
s_lshl_b32 s90, s73, 15
s_mov_b32 s72, 3
s_mov_b32 s75, 0
s_mov_b32 s76, {K2_STAGE}''')
def adma(st):
    out = []
    for p in range(2):
        out.append((f's_lshl_b32 s73, s{85+st}, 15\ns_add_u32 s73, s73, s90\n' if p == 0 else '') + f's_add_u32 m0, s{93+p}, {st*K2_STAGE}\ns_nop 0\nbuffer_load_dwordx4 v{1+p}, s[4:7], s73 offen {ASC} lds')
        out.append(f'buffer_load_dwordx4 v{1+p}, s[4:7], s73 offen offset:1024 {ASC} lds')
    return out
def early_a(a, sts):
    for st in sts:
        for t in adma(st): a(t)

def pre_epi(a):
    srd(a, 12, 62, WS_SIZE)
    srd(a, 16, 32, 4194304)
    srd(a, 20, 48, 2048)
    a(f'''v_lshrrev_b32 v26, 2, v23
v_lshlrev_b32 v26, 4, v26
v_and_b32 v27, 3, v23
s_lshl_b32 s80, s67, 8
s_lshl_b32 s81, s65, 6
s_add_u32 s80, s80, s81
v_add3_u32 v26, v26, v27, s80
v_lshlrev_b32 v27, 2, v26''')
    for b in range(4):
        a(f'''s_add_u32 s81, s69, {b}
s_and_b32 s81, s81, 3
s_lshl_b32 s81, s81, 4
s_add_u32 s81, s81, {G_OFF}
buffer_load_dword v{224+b}, v27, s[12:15], s81 offen {SC}''')
    a(f'''s_lshl_b32 s81, s69, 2
v_add_u32 v26, s81, v26
s_lshl_b32 s80, s78, 7
s_lshl_b32 s81, s66, 6
s_add_u32 s80, s80, s81
v_lshl_add_u32 v27, v24, 2, s80
v_lshlrev_b32 v28, 1, v27
v_lshl_add_u32 v29, v26, 11, v28
v_lshlrev_b32 v31, 2, v27
v_lshl_add_u32 v31, v26, 12, v31''')
    for nb in range(4):
        a(f'buffer_load_dwordx2 v[{228+2*nb}:{229+2*nb}], v29, s[16:19], 0 offen offset:{32*nb}')
        a(f'buffer_load_dwordx2 v[{236+2*nb}:{237+2*nb}], v28, s[20:23], 0 offen offset:{32*nb}')

def bases(a):
    a('v_and_b32 v50, 15, v0\nv_lshrrev_b32 v51, 4, v0\nv_lshlrev_b32 v52, 4, v0')
    a(f'''; a-type bases: hA: rr=(l>>2)&3, cq=l&3, ch=8G+rr(+4h) ; unit = 32cq + (ch ^ (4(cq&1)+16(cq>>1)))
v_bfe_u32 v53, v0, 2, 2
v_and_b32 v54, 3, v0
v_lshl_add_u32 v55, v51, 3, v53
v_and_b32 v46, 1, v54
v_lshlrev_b32 v46, 2, v46
v_lshrrev_b32 v47, 1, v54
v_lshl_or_b32 v46, v47, 4, v46
v_xor_b32 v55, v55, v46
v_lshl_add_u32 v55, v54, 5, v55
v_lshlrev_b32 v55, 3, v55
s_lshl_b32 s80, s65, 13
v_add_u32 v7, s80, v55
v_xor_b32 v8, 32, v7
v_add_u32 v11, s80, v52
v_lshrrev_b32 v55, 1, v50
v_xor_b32 v55, v55, v51
v_lshlrev_b32 v55, 4, v55
v_lshl_add_u32 v55, v50, 7, v55
s_lshl_b32 s80, s66, 13
s_add_u32 s80, s80, 32768
v_add_u32 v9, s80, v55
v_xor_b32 v10, 64, v9
v_lshl_add_u32 v55, v51, 2, v53
v_and_b32 v46, 7, v55
v_lshlrev_b32 v46, 1, v46
s_lshl_b32 s80, s66, 3
v_add_u32 v47, s80, v47
v_xor_b32 v46, v46, v47
v_lshlrev_b32 v46, 4, v46
v_lshl_add_u32 v46, v55, 8, v46
v_and_b32 v47, 1, v54
v_lshl_add_u32 v46, v47, 3, v46
v_add_u32 v12, 32768, v46
v_xor_b32 v13, 32, v12
v_xor_b32 v14, 64, v12
v_xor_b32 v15, 96, v12''')

def gen_k2(a):
    a.label('k2_start')
    a('''s_mov_b32 s70, 0
v_and_b32 v23, 15, v0
v_lshrrev_b32 v24, 4, v0
v_lshlrev_b32 v25, 4, v0''')
    stamp(a, 0, 244)
    stamp_flush(a, 56, 0, 16, 64, mid=True)
    for t in addr_update('b', 75): a(t)
    a('''s_waitcnt vmcnt(4)
s_barrier''')
    stamp(a, 1, 244)
    for t in reads(0, 'b', 0): a(t)
    step(a, 'b', 'b', 'b', vm='s_waitcnt vmcnt(12) lgkmcnt(0)', first=True, nod0=True)
    step(a, 'b', 'b', 'b', vm='s_waitcnt vmcnt(14) lgkmcnt(0)')
    step(a, 'b', 'b', 'b', post=f'''s_cmp_lg_u32 s64, 0
s_cbranch_scc1 k2_nf
s_add_u32 s80, s101, {HD_OFF}
v_mov_b32 v21, 0
v_mov_b32 v22, s100
s_mov_b64 exec, 1
buffer_store_dword v22, v21, s[16:19], s80 offen {SC}
s_mov_b64 exec, -1
k2_nf:''')
    step(a, 'b', 'b', 'b', vm='''s_cmp_eq_u32 s64, 0
s_cbranch_scc1 k2_w7
s_waitcnt vmcnt(6)
k2_w7:
s_waitcnt vmcnt(7) lgkmcnt(0)''')
    a.label('k2_lb')
    step(a, 'b', 'b', 'b')
    a('s_cmp_lt_u32 s70, 10\ns_cbranch_scc1 k2_lb')
    step(a, 'b', 'b', 'b', post=f'''v_and_b32 v21, 31, v0
v_lshlrev_b32 v21, 7, v21
s_lshl_b32 s91, s67, 12
s_add_u32 s91, s91, {HD_OFF}
buffer_load_dword v22, v21, s[16:19], s91 offen {SC}''')
    step(a, 'b', 'b', 's', post=f'''k2_hp:
v_cmp_ne_u32 vcc, s100, v22
s_nop 3
s_cbranch_vccz k2_hq
s_sleep 2
buffer_load_dword v22, v21, s[16:19], s91 offen {SC}
s_waitcnt vmcnt(0)
s_branch k2_hp
k2_hq:''')
    L = []
    pre_epi(lambda t: L.append(t))
    step(a, 'b', 'b', 'a', post='\n'.join(L))
    step(a, 'b', 'a', 'a', vm='s_waitcnt vmcnt(18) lgkmcnt(0)')
    step(a, 'a', 'a', 'a', first=True)
    a.label('k2_la')
    step(a, 'a', 'a', 'a')
    a('s_cmp_lt_u32 s70, 19\ns_cbranch_scc1 k2_la')
    step(a, 'a', 'a', 'a', vm='s_waitcnt vmcnt(6) lgkmcnt(0)', d1=False)
    step(a, 'a', 'a', 'a', vm='s_waitcnt vmcnt(0) lgkmcnt(0)', d0=False, d1=False)
    step(a, 'a', None, 'a', vm='s_waitcnt lgkmcnt(0)', d0=False, d1=False, bar=False)
    a.label('k2_epi')
    stamp(a, 2, 244)
    srd(a, 24, 58, 8388608)
    a(f'''s_lshl_b32 s80, s67, 3
s_add_u32 s88, s80, s78
s_lshl_b32 s80, s88, 18
s_add_u32 s80, s80, {X_OFF}
s_lshl_b32 s81, s64, 11
s_add_u32 s89, s80, s81
s_lshl_b32 s81, s69, 14
s_add_u32 s90, s89, s81
v_lshlrev_b32 v25, 4, v0
s_waitcnt lgkmcnt(0)''')
    for b in range(4):
        a(f'v_sub_f32 v{164+b}, 1.0, v{224+b}\nv_cvt_pk_bf16_f32 v{164+b}, v{164+b}, v{164+b}\nv_lshlrev_b32 v{164+b}, 16, v{164+b}')
    for b in [1, 2, 3, 0]:
        for k in range(16):
            a(f'v_mul_f32 v{ACCA+16*b+k}, v{ACCA+16*b+k}, v{224+b}\nv_fmac_f32 v{ACCA+16*b+k}, v{ACCB+16*b+k}, v{164+b}')
        if b:
            a(f's_add_u32 s81, s69, {b}\ns_and_b32 s81, s81, 3\ns_lshl_b32 s81, s81, 16\ns_add_u32 s81, s81, s90')
            t = 168 + 8*(b-1)
            for k in range(8): a(f'v_cvt_pk_bf16_f32 v{t+k}, v{ACCA+16*b+2*k}, v{ACCA+16*b+2*k+1}')
            for h in range(2):
                a(f'buffer_store_dwordx4 v[{t+4*h}:{t+4*h+3}], v25, s[12:15], s81 offen offset:{1024*h} {SC}')
    stamp(a, 3, 244)
    for nb in range(4):
        for h in range(2):
            x = 228+2*nb+h; dd = 236+2*nb+h; o = ACCA + 4*nb + 2*h
            a(f'''v_lshlrev_b32 v192, 16, v{x}
v_and_b32 v193, 0xffff0000, v{x}
v_lshlrev_b32 v194, 16, v{dd}
v_and_b32 v195, 0xffff0000, v{dd}
v_mul_f32 v192, v192, v194
v_mul_f32 v193, v193, v195
v_cvt_pk_bf16_f32 v192, v192, v193
v_lshlrev_b32 v193, 16, v192
v_and_b32 v192, 0xffff0000, v192
v_fmac_f32 v{o}, v193, v224
v_fmac_f32 v{o+1}, v192, v224''')
    a(f'''s_lshl_b32 s80, s88, 12
s_lshl_b32 s81, s64, 7
s_add_u32 s80, s80, s81
s_add_u32 s80, s80, {FLAG_OFF}
s_lshl_b32 s81, s69, 10
s_add_u32 s81, s81, s80
v_mov_b32 v192, 0
v_mov_b32 v193, s100
v_and_b32 v194, 3, v0
v_lshlrev_b32 v194, 10, v194
s_waitcnt vmcnt(0)''')
    stamp(a, 4, 244)
    a(f'''s_mov_b64 exec, 1
buffer_store_dword v193, v192, s[12:15], s81 offen {SC}
s_mov_b64 exec, 15
s_lshl_b32 s81, s69, 16
s_add_u32 s89, s89, s81''')
    a.label('k2_poll')
    a(f'''buffer_load_dword v195, v194, s[12:15], s80 offen {SC}
s_waitcnt vmcnt(0)
v_cmp_ne_u32 vcc, s100, v195
s_nop 3
s_cbranch_vccz k2_nopoll
s_sleep 1
s_branch k2_poll''')
    a.label('k2_nopoll')
    a('s_mov_b64 exec, -1')
    stamp(a, 5, 244)
    for b in range(1, 4):
        a(f's_add_u32 s81, s69, {b}\ns_and_b32 s81, s81, 3\ns_lshl_b32 s81, s81, 14\ns_add_u32 s81, s81, s89')
        t = 168 + 8*(b-1)
        for h in range(2):
            a(f'buffer_load_dwordx4 v[{t+4*h}:{t+4*h+3}], v25, s[12:15], s81 offen offset:{1024*h} {SC}')
    a('s_waitcnt vmcnt(0)')
    stamp(a, 6, 244)
    for nb in range(4):
        for k in range(2*nb, 2*nb+2):
            for b in range(3):
                t = 168 + 8*b + k
                a(f'v_lshlrev_b32 v192, 16, v{t}\nv_and_b32 v193, 0xffff0000, v{t}\nv_add_f32 v{ACCA+2*k}, v{ACCA+2*k}, v192\nv_add_f32 v{ACCA+2*k+1}, v{ACCA+2*k+1}, v193')
        a(f'buffer_store_dwordx4 v[{ACCA+4*nb}:{ACCA+4*nb+3}], v31, s[24:27], 0 offen offset:{64*nb} {os.environ.get("OUTF", "nt")}')
    if STAMP: a('s_waitcnt vmcnt(0)')
    stamp_flush(a, 244, 1, 12, 64)
    a.label('k1_end')
    a('s_endpgm')
```

```python
from asmlib import *
A2_OFF = 0; A2_SIZE = 8*88*32768
G_OFF = 0x1600000; AGG_OFF = 0x1610000; X_OFF = 0x2000000; FLAG_OFF = 0x1640000; HF_OFF = 0x1690000; HD_OFF = 0x16a0000
WS_SIZE = 268435456
LOG2E = 0x3fb8aa3b; INV2PI = 0x3e22f983
K1_AW = 47104; K1_BU = 0; K1_A0 = 16384; K1_DUMMY = K1_A0 + 3*K1_AW; K1_ESC = K1_DUMMY; K1_CNT = K1_ESC + 4096; K1_LDS = K1_CNT + 256

def srd(a, d, lo, rec, off=0):
    if off:
        a(f's_add_u32 s{d}, s{lo}, {off}\ns_addc_u32 s{d+1}, s{lo+1}, 0')
    else:
        a(f's_mov_b32 s{d}, s{lo}\ns_mov_b32 s{d+1}, s{lo+1}')
    a(f's_mov_b32 s{d+2}, {rec}\ns_mov_b32 s{d+3}, 0x00020000')

def cpow(a, dr, di, a2, th, n, t0, t1):
    a(f'''v_mul_f32 v{t0}, {n}, v{a2}
v_mul_f32 v{t1}, {n}, v{th}
v_exp_f32 v{t0}, v{t0}
v_fract_f32 v{t1}, v{t1}
v_cos_f32 v{dr}, v{t1}
v_sin_f32 v{di}, v{t1}
v_mul_f32 v{dr}, v{dr}, v{t0}
v_mul_f32 v{di}, v{di}, v{t0}''')

def params(a, lre, lim, ldt, a2, th):
    a(f'''v_lshlrev_b32 v{lre}, 16, v{lre}
v_lshlrev_b32 v{lim}, 16, v{lim}
v_lshlrev_b32 v{ldt}, 16, v{ldt}
v_mul_f32 v{ldt}, {LOG2E}, v{ldt}
v_exp_f32 v{ldt}, v{ldt}
v_cvt_pk_bf16_f32 v{ldt}, v{ldt}, v{ldt}
v_lshlrev_b32 v{ldt}, 16, v{ldt}
v_mul_f32 v{a2}, v{ldt}, v{lre}
v_mul_f32 v{th}, v{ldt}, v{lim}
v_mul_f32 v{a2}, {LOG2E}, v{a2}
v_mul_f32 v{th}, {INV2PI}, v{th}''')

SC = os.environ.get('SC', 'sc1')
NTX = os.environ.get('NTX', ''); NTW = os.environ.get('NTW', ''); NTB = os.environ.get('NTB', ''); NTM = os.environ.get('NTM', '')
WT = ' ' + os.environ.get('WT', 'sc1')
WB = bool(os.environ.get('WB')); WTH = '' if WB else WT
ACC = 64; SET = [160, 200]
def k1_frag(st, kind, n):
    base = SET[st] + (0 if kind == 'A' else 16) + 4*n
    return base
def k1_mfmas(st, c):
    nb = 6 if c == 0 else 5
    out = []
    for n in range(nb):
        for b in range(4):
            d = ACC + (n*4 + b)*4
            A = k1_frag(st, 'A', b); B = k1_frag(st, 'B', n)
            if n < 2: x, y = A, B
            else: x, y = B, A
            out.append(f'v_mfma_f32_16x16x32_bf16 v[{d}:{d+3}], v[{x}:{x+3}], v[{y}:{y+3}], v[{d}:{d+3}]')
    return out
def k1_reads(st, c, sub):
    def rdA(b):
        f = k1_frag(st, 'A', b); return f'ds_read_b128 v[{f}:{f+3}], v{50+sub} offset:{b*2048}'
    def rdB(n):
        f = k1_frag(st, 'B', n); return f'ds_read_b128 v[{f}:{f+3}], v{52+sub} offset:{n*2048}'
    def rdW(n, h):
        f = k1_frag(st, 'B', 2+n) + 2*h
        if c == 1 and n == 2: reg, blk = 55, 0
        else: reg, blk = 54, n
        return f'ds_read_b64_tr_b16 v[{f}:{f+1}], v{reg} offset:{sub*7168 + h*1792 + blk*32}'
    out = [rdA(0), rdB(0), rdA(1), rdA(2), rdA(3), rdB(1)]
    for n in range(4 if c == 0 else 3):
        out += [rdW(n, 0), rdW(n, 1)]
    return out
def k1_dma_aw():
    out = []
    for p in range(4):
        out.append(f's_add_u32 m0, s93, s{[73,100,101,78][p]}\ns_nop 0\nbuffer_load_dwordx4 v{1+p}, s[4:7], s70 offen {NTX} lds')
    out.append(f's_add_u32 m0, s93, s75\ns_add_u32 s70, s70, 128\nbuffer_load_dwordx4 v6, s[12:15], s71 offen {NTW} lds')
    out.append(f's_mul_i32 s97, s93, s77\ns_add_u32 m0, s97, s76\ns_nop 0\nbuffer_load_dwordx4 v7, s[12:15], s71 offen {NTW} lds\ns_add_u32 s71, s71, 458752')
    return out
def k1_dma_bu():
    return f's_add_u32 m0, s94, s74\ns_nop 0\nbuffer_load_dwordx4 v5, s[8:11], s72 offen {NTB} lds\ns_add_u32 s72, s72, 128'
def k1_pf():
    return f'buffer_load_dword v49, v36, s[24:27], s79 offen {NTM}\ns_add_u32 s79, s79, s92'
def place(mf, early, spread, ph):
    n = len(mf); slots = [[] for _ in range(n)]
    for k, e in enumerate(early): slots[min(k, n-1)].append(e)
    m = len(spread)
    for k, e in enumerate(spread): slots[min(n-1, int((k + ph) * n / m))].append(e)
    out = []
    for k in range(n): out += [mf[k]] + slots[k]
    return out
def weave(seq, ex):
    idx = [k for k, t in enumerate(seq) if t.startswith('v_mfma')]
    if not ex: return seq
    per = -(-len(ex) // len(idx)); out = []; e = 0
    for k, t in enumerate(seq):
        out.append(t)
        if t.startswith('v_mfma'):
            out += ex[e:e+per]; e += per
    return out
NSW = 1 if os.environ.get('SW') else 0
def k1_sweep(a):
    if not NSW: return
    a(f'''s_cmp_ge_u32 s64, 4
s_cselect_b64 s[28:29], s[38:39], s[32:33]
s_mov_b32 s30, 4194304
s_cselect_b32 s30, 2097152, s30
s_cselect_b32 s81, 1, 2
s_cselect_b32 s82, 1, 3
s_cmp_ge_u32 s64, 6
s_cselect_b64 s[28:29], s[40:41], s[28:29]
s_mov_b32 s31, 0x00020000
s_lshl_b32 s80, s2, s81
s_and_b32 s82, s82, s64
s_add_u32 s80, s80, s82
s_lshl_b32 s80, s80, 12
v_lshlrev_b32 v48, 6, v0
buffer_load_dword v49, v48, s[28:31], s80 offen''')
MWF = '''s_lshl_b32 s81, s67, 4
s_lshr_b32 s80, s68, 2
s_lshl_b32 s80, s80, 1
s_add_u32 s81, s81, s80
s_and_b32 s80, s68, 1
s_add_u32 s81, s81, s80
s_mul_i32 s80, s81, 5
s_add_u32 s80, s80, s64
s_lshl_b32 s80, s80, 10
s_lshl_b32 s81, s81, 11
s_cmp_lt_u32 s64, 5
s_cselect_b32 s79, s80, s81
s_mov_b32 s92, 262144
s_cselect_b32 s92, 655360, s92
s_mov_b32 s26, 2097152
s_cselect_b32 s26, 7340032, s26
s_cselect_b32 s80, 4, 5
s_cmp_eq_u32 s64, 7
s_cselect_b32 s26, 0, s26
s_add_u32 s81, s68, 1
s_bitcmp1_b32 s81, 1
s_cselect_b32 s26, 0, s26
'''
MWA = '''s_mul_i32 s80, s2, 5
s_add_u32 s80, s80, s64
s_lshl_b32 s80, s80, 9
s_lshl_b32 s81, s2, 10
s_cmp_lt_u32 s64, 5
s_cselect_b32 s79, s80, s81
s_mov_b32 s92, 262144
s_cselect_b32 s92, 655360, s92
s_mov_b32 s26, 2097152
s_cselect_b32 s26, 7340032, s26
s_cselect_b32 s80, 3, 4
s_cmp_eq_u32 s64, 7
s_cselect_b32 s26, 0, s26
'''
ROT = bool(os.environ.get('ROT'))
MWT = os.environ.get('MWT', '1') != '0'
def k1_mwb(a):
    if MWT or os.environ.get('NOMW'): return
    if not ROT:
        a('''s_cmp_ge_u32 s64, 4
s_cselect_b64 s[24:25], s[44:45], s[42:43]
s_mov_b32 s26, 2097152
s_mov_b32 s27, 0x00020000
s_lshr_b32 s80, s101, 5
s_add_u32 s80, s80, s65
s_lshl_b32 s80, s80, 11
v_lshlrev_b32 v36, 5, v0
buffer_load_dword v49, v36, s[24:27], s80 offen''')
        return
    a(f'''s_cmp_eq_u32 s64, 5
s_cselect_b64 s[24:25], s[42:43], s[54:55]
s_cmp_eq_u32 s64, 6
s_cselect_b64 s[24:25], s[44:45], s[24:25]
s_mov_b32 s27, 0x00020000
s_lshr_b32 s81, s101, 7
s_mul_i32 s80, s81, 5
s_add_u32 s80, s80, s64
s_mul_i32 s80, s80, 5760
s_lshl_b32 s81, s81, 13
s_cmp_lt_u32 s64, 5
s_cselect_b32 s80, s80, s81
s_mov_b32 s26, 2097152
s_cselect_b32 s26, 7340032, s26
s_cselect_b32 s81, 45, 64
s_cmp_eq_u32 s64, 7
s_cselect_b32 s26, 0, s26
v_lshlrev_b32 v36, 7, v0
v_add_u32 v36, s80, v36
v_mov_b32 v37, 0x80000000
v_cmp_gt_u32 vcc, s81, v0
v_cndmask_b32 v36, v37, v36, vcc
buffer_load_dword v49, v36, s[24:27], 0 offen''')
def k1_mw(a):
    if not MWT:
        k1_sweep(a); return
    a(f'''s_cmp_eq_u32 s64, 5
s_cselect_b64 s[24:25], s[42:43], s[54:55]
s_cmp_eq_u32 s64, 6
s_cselect_b64 s[24:25], s[44:45], s[24:25]
s_mov_b32 s27, 0x00020000
{MWF if os.environ.get('MWT') == '2' else MWA}v_lshlrev_b32 v36, s80, v0''')
    k1_sweep(a)
def noB(rd):
    out = []
    for t in rd:
        t = '\n'.join(x for x in t.split('\n') if not re.match(r'ds_read_b128 v\[\d+:\d+\], v5[23] ', x))
        if t: out.append(t)
    return out
def k1_step(a, c, dma0, dma1, bu, last, vm, first=False, ex=[], mw=False, ho=False):
    aw = k1_dma_aw()
    if EXP in ('nodma',): dma0 = dma1 = bu = False
    ph = float(os.environ.get('Q0', 0.2)) if c == 0 else float(os.environ.get('Q1', 0.7))
    a('s_waitcnt lgkmcnt(0)')
    m0 = k1_mfmas(0, c)
    if first: m0 = [re.sub(r', v\[\d+:\d+\]$', ', 0', m) for m in m0]
    h = len(ex)//2
    if ho: m0 = m0[8:]
    for t in weave(place(m0, noB(k1_reads(1, c, 1)) if ho else k1_reads(1, c, 1), (aw + ['\n'.join(k1_small())] if first else aw[3:] if dma0 else []) + ([k1_pf()]*NPF0 if first else []), ph), ex[:h]): a(t)
    if not last:
        a(f's_waitcnt vmcnt({vm}) lgkmcnt(0)\ns_barrier' if EXP != 'novm' else 's_waitcnt lgkmcnt(0)\ns_barrier')
    else:
        a('s_waitcnt lgkmcnt(0)')
    fill = []
    if not last:
        a(f'''s_mov_b32 s93, s96
s_mov_b32 s96, s95
v_add_u32 v50, s95, v8
v_xor_b32 v52, 0x2000, v52
v_add_u32 v54, s95, v12
v_add_u32 v55, s95, v13''')
        fill = k1_reads(0, c, 0)
        fill[0] += '\nv_add_u32 v51, s95, v9\nv_xor_b32 v53, 0x2000, v53'
        fill[2] += f'\ns_add_u32 s95, s95, {K1_AW}\ns_cmp_lt_u32 s95, {3*K1_AW}\ns_cselect_b32 s95, s95, 0'
        if bu: fill[1] += '\n' + k1_dma_bu() + '\ns_xor_b32 s94, s94, 0x2000'
    sp = (aw[:3] if dma1 else []) + ([k1_pf()] if dma1 and MWT else [])
    if mw:
        fill[3] += '\ns_mov_b32 s28, s60\ns_mov_b32 s29, s61\ns_mov_b32 s30, 256\ns_mov_b32 s31, 0x00020000\nv_mov_b32 v33, 0'
        fill[5] += f'\nbuffer_load_dword v48, v33, s[28:31], 0 offen {SC}'
    if ho: fill = noB(fill)
    for t in weave(place(k1_mfmas(1, c)[8 if ho else 0:], fill, sp, ph), ex[h:]): a(t)

PF = int(os.environ.get('PF', '0')); PFD = int(os.environ.get('PFD', '4')); NPF0 = PFD if PF else 0
def k1_pf_setup(a):
    if not PF: return
    a(f'''s_and_b32 s80, s64, 3
s_cmp_eq_u32 s80, 1
s_cselect_b64 s[28:29], s[38:39], s[32:33]
s_cmp_eq_u32 s80, 2
s_cselect_b64 s[28:29], s[40:41], s[28:29]
s_cmp_eq_u32 s80, 3
s_cselect_b64 s[28:29], s[52:53], s[28:29]
s_movk_i32 s92, 128
s_mov_b32 s30, 2097152
s_cselect_b32 s92, 458752, s92
s_cselect_b32 s30, 7340032, s30
s_mov_b32 s31, 0x00020000
s_cmp_eq_u32 s80, 0
s_cselect_b32 s30, 4194304, s30
; x row = 256i + 32(j&7) + l (l<32)
s_lshl_b32 s81, s67, 8
s_and_b32 s82, s68, 7
s_lshl_b32 s82, s82, 5
s_add_u32 s81, s81, s82
; B row = 32j + 8(i&3) + l (l<8)
s_lshl_b32 s82, s68, 5
s_and_b32 s85, s67, 3
s_lshl_b32 s86, s85, 3
s_add_u32 s82, s82, s86
s_cmp_eq_u32 s80, 0
s_cselect_b32 s81, s81, s82
s_cselect_b32 s82, 32, 8
v_add_u32 v48, s81, v0
v_lshlrev_b32 v48, 11, v48
s_lshl_b32 s85, s85, 4
v_lshrrev_b32 v46, 2, v0
v_add_u32 v46, s85, v46
v_mul_u32_u24 v46, 7168, v46
v_and_b32 v47, 3, v0
v_lshl_add_u32 v46, v47, 7, v46
s_and_b32 s85, s84, 0xffffff80
v_add_u32 v46, s85, v46
v_mov_b32 v45, 0x80000000
v_cmp_eq_u32 vcc, 3, v47
v_cndmask_b32 v46, v46, v45, vcc
v_cmp_le_u32 vcc, s82, v0
v_cndmask_b32 v48, v48, v45, vcc
s_cmp_eq_u32 s80, 3
s_cbranch_scc0 k1_pfa
v_mov_b32 v48, v46
k1_pfa:
s_mul_i32 s79, s92, 3
s_cmp_ge_u32 s64, 4
s_cselect_b32 s80, 64, 0
s_add_u32 s79, s79, s80
s_cselect_b32 s30, {'s30' if PF == 2 else '0'}, s30''')

def k1_hidden(c):
    setup = '''s_mul_i32 s80, s68, 112
s_add_u32 s81, s80, s89
s_lshr_b32 s81, s81, 5
s_add_u32 s82, s80, s91
s_lshr_b32 s82, s82, 5
s_mul_i32 s83, s67, 88
s_add_u32 s83, s83, 32
s_lshl_b32 s83, s83, 15
s_lshl_b32 s84, s65, 13
s_add_u32 s83, s83, s84
v_lshlrev_b32 v1, 4, v0
v_add_u32 v2, 4096, v1
s_lshl_b32 s84, s88, 3
v_add_u32 v3, s84, v1
v_add_u32 v4, s84, v2'''
    def kfoff(src, dst):
        return f's_lshr_b32 s71, s{src}, 1\ns_lshl_b32 s71, s71, 15\ns_and_b32 s72, s{src}, 1\ns_lshl_b32 s72, s72, 10\ns_add_u32 s71, s71, s72\ns_add_u32 s{dst}, s71, s83\n'
    groups = [(2, 3), (4, 5)] if c == 0 else [(2, 3), (4,)]
    H = []
    for gi, grp in enumerate(groups):
        for b in range(4):
            x = ''
            if b == 0: x = kfoff(81, 92) + 's_add_u32 s81, s81, 1\n' if len(grp) == 2 else kfoff(82, 92)
            t = [184, 224][gi] + 4*b
            for u, n in enumerate(grp):
                d = ACC + (n*4 + b)*4
                x += f'v_cvt_pk_bf16_f32 v{t+2*u}, v{d}, v{d+1}\nv_cvt_pk_bf16_f32 v{t+2*u+1}, v{d+2}, v{d+3}\n'
            for k in range(2*len(grp)): x += f'v_pk_max_i16 v{t+k}, v{t+k}, 0\n'
            if len(grp) == 2:
                x += f'buffer_store_dwordx4 v[{t}:{t+3}], v{1 + (b >> 1)}, s[16:19], s92 offen offset:{2048*(b & 1)}{WTH}'
            else:
                x += f'buffer_store_dwordx2 v[{t}:{t+1}], v{3 + (b >> 1)}, s[16:19], s92 offen offset:{2048*(b & 1)}{WTH}'
            H.append(x)
    return setup, H
def k1_last(a, c, ex):
    m = [k1_mfmas(0, c), k1_mfmas(1, c)]
    setup, H = k1_hidden(c)
    def trd(st, ra, rb):
        A = lambda b: f'ds_read_b128 v[{k1_frag(st,"A",b)}:{k1_frag(st,"A",b)+3}], v{ra} offset:{b*2048}'
        B = lambda n: f'ds_read_b128 v[{k1_frag(st,"B",n)}:{k1_frag(st,"B",n)+3}], v{rb} offset:{n*2048}'
        return [A(0), B(0), A(1), A(2), A(3), B(1)]
    rd = noB(k1_reads(1, c, 1))
    rd[-1] += '\n' + setup + f'\nv_add_u32 v5, {2*K1_AW}, v8\nv_add_u32 v6, {2*K1_AW}, v9'
    h = len(ex)//2
    a('s_waitcnt lgkmcnt(0)')
    for t in weave(place(m[0][8:], rd, [], 0), ex[:h]): a(t)
    a('s_waitcnt lgkmcnt(0)')
    for t in weave(place(m[1][8:], trd(0, 5, 10), [], 0), ex[h:]): a(t)
    AG = 240
    srd(a, 20, 62, 131072, AGG_OFF)
    a(f'''s_lshr_b32 s69, s68, 3
s_and_b32 s78, s68, 7
v_and_b32 v32, 15, v0
s_sub_u32 s80, s67, 7
s_lshl_b32 s80, s80, 14
s_lshl_b32 s84, s68, 9
s_add_u32 s80, s80, s84
s_add_u32 s80, s80, {256*c}
v_lshlrev_b32 v27, 4, v32
v_lshrrev_b32 v44, 4, v0
v_lshl_add_u32 v27, v44, 14, v27
v_add_u32 v27, s80, v27
v_add_u32 v252, 0x10000, v27
v_mov_b32 v45, 0x80000000
v_cmp_eq_u32 vcc, 3, v44
v_cndmask_b32 v252, v252, v45, vcc
v_cmp_gt_u32 vcc, 0x20000, v27
v_cndmask_b32 v253, 0, -1, vcc
v_cmp_gt_u32 vcc, 0x20000, v252
v_cndmask_b32 v254, 0, -1, vcc
s_lshl_b32 s80, s67, 5
s_lshl_b32 s84, s69, 3
s_add_u32 s80, s80, s84
s_lshl_b32 s80, s80, 7
s_add_u32 s70, s80, {HF_OFF}
v_and_b32 v30, 7, v0
s_cmp_lt_u32 s78, {0 if ROT else 2}
s_cselect_b32 s84, 8, s78
v_cmp_ne_u32 vcc, s84, v30
v_cndmask_b32 v43, 0, -1, vcc
v_lshlrev_b32 v30, 7, v30''')
    a(f'buffer_load_dwordx4 v[{AG}:{AG+3}], v27, s[20:23], 0 offen {SC}\nbuffer_load_dwordx4 v[{AG+4}:{AG+7}], v252, s[20:23], 0 offen {SC}\nbuffer_load_dword v31, v30, s[16:19], s70 offen {SC}')
    nxt = [trd(1, 6, 11), trd(0, 50, 52), trd(1, 51, 53), []]
    for g in range(4):
        a('s_waitcnt lgkmcnt(0)')
        for t in place(m[g & 1][:8], nxt[g], H[2*g:2*g+2], 0.5): a(t)

def k1_extra():
    L = []
    def a(t): L.extend([x.strip() for x in t.strip().split('\n') if x.strip()])
    params(a, 27, 28, 29, 42, 43)
    params(a, 30, 31, 32, 44, 45)
    cpow(a, 14, 15, 42, 43, '1.0', 46, 47)
    a('s_mov_b32 s85, 0x41800000\ns_mov_b32 s86, 0x43800000\nv_cvt_f32_u32 v39, v26\nv_mul_f32 v39, s85, v39')
    cpow(a, 16, 17, 42, 43, 's85', 46, 47)
    a('v_lshrrev_b32 v34, 4, v0\nv_sub_u32 v35, 6, v34\nv_cvt_f32_u32 v35, v35\nv_mul_f32 v35, s86, v35')
    cpow(a, 18, 19, 42, 43, 'v35', 46, 47)
    a('v_add_f32 v35, 0xc4800000, v35\nv_max_f32 v37, 0, v35')
    cpow(a, 34, 35, 42, 43, 'v37', 46, 47)
    cpow(a, 20, 21, 42, 43, 'v39', 46, 47)
    cpow(a, 24, 25, 44, 45, 's85', 46, 47)
    a(f'''v_mul_f32 v46, v27, v27
v_fmac_f32 v46, v28, v28
v_rcp_f32 v46, v46
v_add_f32 v47, -1.0, v14
v_mul_f32 v22, v47, v27
v_fmac_f32 v22, v15, v28
v_mul_f32 v23, v15, v27
v_fma_f32 v23, -v47, v28, v23
v_add_f32 v46, v46, v46
v_mul_f32 v22, v22, v46
v_mul_f32 v23, v23, v46''')
    a('v_mov_b32 v40, 0\nv_mov_b32 v41, 0')
    for k in range(8):
        x = 240+k; g = 248+k
        a(f'''v_lshlrev_b32 v42, 16, v{x}
v_and_b32 v43, 0xffff0000, v{x}
v_lshlrev_b32 v44, 16, v{g}
v_and_b32 v45, 0xffff0000, v{g}
v_mul_f32 v42, v42, v44
v_mul_f32 v43, v43, v45
v_cvt_pk_bf16_f32 v42, v42, v43
v_lshlrev_b32 v43, 16, v42
v_and_b32 v42, 0xffff0000, v42
v_add_f32 v40, v40, v43
v_add_f32 v41, v41, v42''')
    a('v_add_f32 v40, v40, v41')
    for m in ['row_shr:1 row_mask:0xf', 'row_shr:2 row_mask:0xf', 'row_shr:4 row_mask:0xf', 'row_shr:8 row_mask:0xf', 'row_bcast:15 row_mask:0xa', 'row_bcast:31 row_mask:0xc']:
        a(f'v_add_f32_dpp v40, v40, v40 {m} bank_mask:0xf')
    a(f'''v_readlane_b32 s85, v40, 63
v_mov_b32 v40, s85
v_cvt_pk_bf16_f32 v40, v40, v40
v_lshlrev_b32 v40, 16, v40
v_mul_f32 v40, {LOG2E | 0x80000000}, v40
v_exp_f32 v40, v40
v_add_f32 v40, 1.0, v40
v_rcp_f32 v40, v40
v_cvt_pk_bf16_f32 v40, v40, v40
v_lshlrev_b32 v40, 16, v40
s_lshl_b32 s85, s87, 2
s_add_u32 s85, s85, {G_OFF}
v_mov_b32 v41, 0
buffer_store_dword v40, v41, s[16:19], s85 offen {SC}''')
    return L

def k1_small():
    L = []
    def a(t): L.append(t.strip())
    a(f'''s_lshl_b32 s85, s67, 8
s_lshl_b32 s87, s68, 3
s_add_u32 s87, s87, s85
s_add_u32 s87, s87, s64
s_lshl_b32 s85, s87, 11
v_lshlrev_b32 v40, 5, v0
buffer_load_dwordx4 v[240:243], v40, s[4:7], s85 offen
buffer_load_dwordx4 v[244:247], v40, s[4:7], s85 offen offset:16
buffer_load_dwordx4 v[248:251], v40, s[20:23], 0 offen
buffer_load_dwordx4 v[252:255], v40, s[20:23], 0 offen offset:16
v_and_b32 v41, 15, v0
v_add_u32 v37, s83, v41
v_lshlrev_b32 v37, 1, v37
v_and_b32 v38, 31, v0
s_lshl_b32 s85, s68, 5
v_add_u32 v38, s85, v38
v_lshlrev_b32 v38, 1, v38''')
    for k, (lo, d) in enumerate([(34, 27), (36, 28), (46, 29)]):
        srd(a, 28, lo, 2048)
        a(f'buffer_load_ushort v{d}, v37, s[28:31], 0 offen\nbuffer_load_ushort v{d+3}, v38, s[28:31], 0 offen\ns_nop 0')
    return L

STEPST = bool(os.environ.get('STEPST'))
_stamp = stamp
def sst(a, k):
    if STEPST: _stamp(a, k, 56)
def stamp(a, k, base):
    if not (STEPST and k >= 2): _stamp(a, k, base)
TK = bool(os.environ.get('TK'))
TK1 = '''s_getreg_b32 s90, hwreg(HW_REG_XCC_ID, 0, 3)
s_cmp_lg_u32 s64, 0
s_cbranch_scc1 k1_notk
s_waitcnt lgkmcnt(0)
s_mov_b32 s28, s60
s_mov_b32 s29, s61
s_mov_b32 s30, 256
s_mov_b32 s31, 0x00020000
s_lshl_b32 s80, s90, 5
v_mov_b32 v40, 8
v_mov_b32 v41, 1
s_mov_b64 exec, 1
buffer_atomic_add v41, v40, s[28:31], s80 offen sc0 sc1
s_mov_b64 exec, -1
k1_notk:
'''
TK2 = '''s_cmp_lg_u32 s64, 0
s_cbranch_scc1 k1_tkd
s_mov_b64 exec, 1
k1_tk:
s_waitcnt vmcnt(0) lgkmcnt(0)
v_readfirstlane_b32 s79, v41
s_cmp_lt_u32 s79, 32
s_cbranch_scc1 k1_tkok
s_add_u32 s90, s90, 1
s_and_b32 s90, s90, 7
s_lshl_b32 s80, s90, 5
s_mov_b32 s28, s60
s_mov_b32 s29, s61
s_mov_b32 s30, 256
s_mov_b32 s31, 0x00020000
v_mov_b32 v40, 8
v_mov_b32 v41, 1
buffer_atomic_add v41, v40, s[28:31], s80 offen sc0 sc1
s_branch k1_tk
k1_tkok:
s_lshl_b32 s79, s79, 3
s_or_b32 s79, s79, s90
v_mov_b32 v40, 0
v_mov_b32 v41, s79
ds_write_b64 v42, v[40:41]
s_mov_b64 exec, -1
k1_tkd:
s_waitcnt lgkmcnt(0)
s_barrier
ds_read_b32 v41, v42 offset:4
s_waitcnt lgkmcnt(0)
v_readfirstlane_b32 s79, v41
'''
NTK2 = '''v_mov_b32 v40, 0
ds_write_b32 v42, v40
s_mov_b32 s79, s2
s_waitcnt lgkmcnt(0)
'''
def gen_k1(a):
    a.label('kf_kernel')
    a(f'''s_cmp_ge_u32 s2, 256
s_cbranch_scc1 k1_end
s_load_dwordx16 s[32:47], s[0:1], 0
s_load_dwordx16 s[48:63], s[0:1], 64
v_lshrrev_b32 v1, 6, v0
v_and_b32 v0, 63, v0
v_readfirstlane_b32 s64, v1
{TK1 if TK else ''}s_and_b32 s65, s64, 3
s_lshr_b32 s66, s64, 2
v_lshrrev_b32 v30, 3, v0
v_and_b32 v31, 7, v0
v_and_b32 v32, 15, v0
v_lshrrev_b32 v33, 4, v0
s_lshr_b32 s80, s64, 1
s_lshl_b32 s80, s80, 6
s_and_b32 s81, s64, 1
s_lshl_b32 s82, s81, 3
s_add_u32 s80, s80, s82
v_lshrrev_b32 v34, 2, v30
v_lshlrev_b32 v34, 4, v34
v_and_b32 v35, 3, v30
v_add3_u32 v34, v34, v35, s80
v_lshlrev_b32 v34, 11, v34
v_lshrrev_b32 v35, 1, v30
v_xor_b32 v35, v35, v31
v_lshl_add_u32 v1, v35, 4, v34
v_xor_b32 v2, 64, v1
v_add_u32 v2, 0x10000, v2
v_add_u32 v3, 0x2000, v1
v_add_u32 v4, 0x2000, v2
s_lshl_b32 s83, s66, 4
s_lshl_b32 s82, s81, 3
s_add_u32 s82, s82, s83
v_add_u32 v34, s82, v30
v_lshlrev_b32 v34, 11, v34
s_lshl_b32 s82, s81, 2
v_xor_b32 v35, s82, v35
v_lshl_add_u32 v5, v35, 4, v34
; w1 pieces
s_lshl_b32 s82, s64, 6
s_movk_i32 s85, 4682
s_movk_i32 s86, 7168''')
    for p in range(2):
        a(f'''v_add_u32 v34, s82, v0
v_mul_lo_u32 v35, v34, s85
v_lshrrev_b32 v35, 16, v35
v_mul_u32_u24 v36, 14, v35
v_sub_u32 v36, v34, v36
v_and_b32 v37, 0x33, v35
v_and_b32 v38, 4, v35
v_lshl_or_b32 v37, v38, 1, v37
v_and_b32 v38, 8, v35
v_lshrrev_b32 v38, 1, v38
v_or_b32 v37, v37, v38
v_mul_lo_u32 v37, v37, s86
v_lshl_add_u32 v{6+p}, v36, 4, v37
s_add_u32 s82, s82, 512''')
    stamp(a, 0, 56)
    a(f'''v_mov_b32 v35, 0x80000000
v_cmp_lt_u32 vcc, 895, v34
v_cndmask_b32 v7, v7, v35, vcc
s_lshl_b32 s73, s64, 12
s_add_u32 s73, s73, {K1_A0}
s_add_u32 s100, s73, 1024
s_add_u32 s101, s73, 2048
s_add_u32 s78, s73, 3072
s_lshl_b32 s82, s64, 10
s_add_u32 s74, s82, {K1_BU}
s_add_u32 s75, s82, {K1_A0 + 32768}
s_add_u32 s76, s82, {K1_A0 + 40960}
s_sub_u32 s82, s82, 6144
s_add_u32 s82, s82, {K1_DUMMY}
s_cmp_ge_u32 s64, 6
s_cselect_b32 s76, s82, s76
s_cselect_b32 s77, 0, 1
v_mov_b32 v42, {K1_CNT}
{TK2 if TK else NTK2}s_and_b32 s80, s79, 7
s_lshr_b32 s79, s79, 3
s_and_b32 s67, s80, 1
s_lshl_b32 s67, s67, 2
s_and_b32 s81, s79, 3
s_add_u32 s67, s67, s81
s_lshr_b32 s68, s80, 1
s_lshl_b32 s68, s68, 3
s_lshr_b32 s81, s79, 2
s_add_u32 s68, s68, s81
s_lshl_b32 s70, s67, 19
s_lshl_b32 s72, s68, 16
s_mul_i32 s71, s68, 224
s_lshl_b32 s81, s68, 5
s_add_u32 s83, s83, s81''')
    srd(a, 28, 60, 256)
    a(f'''s_or_b32 s80, s2, s64
s_cmp_lg_u32 s80, 0
s_cbranch_scc1 k1_nonon
s_memrealtime s[80:81]
v_mov_b32 v35, 0
s_waitcnt lgkmcnt(0)
s_or_b32 s80, s80, 1
v_mov_b32 v36, s80
s_mov_b64 exec, 1
buffer_store_dword v36, v35, s[28:31], 0 offen {SC}
s_mov_b64 exec, -1
k1_nonon:''')
    srd(a, 4, 32, 4194304)
    a('''s_bitcmp1_b32 s64, 1
s_cselect_b64 s[8:9], s[40:41], s[38:39]
s_mov_b32 s10, 2097152
s_mov_b32 s11, 0x00020000''')
    srd(a, 12, 52, 7340032)
    srd(a, 16, 62, WS_SIZE)
    srd(a, 20, 56, 2048)
    a('s_mov_b32 s93, 0\ns_mov_b32 s94, 0')
    a(k1_dma_bu())
    for t in k1_dma_aw(): a(t)
    k1_pf_setup(a)
    k1_mw(a)
    a(f'''v_and_b32 v37, 15, v0
v_lshrrev_b32 v34, 1, v37
v_xor_b32 v34, v34, v33
v_lshlrev_b32 v34, 4, v34
v_lshl_add_u32 v34, v37, 7, v34
s_lshl_b32 s80, s65, 13
s_add_u32 s80, s80, {K1_A0}
v_add_u32 v8, s80, v34
v_xor_b32 v9, 64, v8
s_lshl_b32 s80, s66, 12
s_add_u32 s80, s80, {K1_BU}
v_add_u32 v10, s80, v34
v_xor_b32 v11, 64, v10
v_lshrrev_b32 v34, 1, v33
v_lshlrev_b32 v34, 4, v34
v_and_b32 v35, 1, v33
v_lshl_add_u32 v34, v35, 2, v34
v_bfe_u32 v35, v0, 2, 2
v_add_u32 v34, v34, v35
v_mul_u32_u24 v34, 224, v34
v_and_b32 v35, 3, v0
v_lshl_add_u32 v34, v35, 3, v34
s_and_b32 s88, s68, 1
s_cmp_eq_u32 s88, 1
s_cselect_b32 s89, 48, 0
s_cselect_b32 s97, 16, 64
s_cselect_b32 s91, 0, 96
s_cmp_eq_u32 s66, 0
s_cselect_b32 s89, s89, s97
s_lshl_b32 s80, s89, 1
s_add_u32 s80, s80, {K1_A0 + 32768}
v_add_u32 v12, s80, v34
s_lshl_b32 s80, s91, 1
s_add_u32 s80, s80, {K1_A0 + 32768}
v_add_u32 v13, s80, v34
s_lshl_b32 s80, s65, 2
v_add_u32 v26, s80, v33''')
    a(f's_mov_b32 s93, {K1_AW}\ns_mov_b32 s94, 0x2000')
    a(k1_dma_bu())
    for t in k1_dma_aw(): a(t)
    a(f's_mov_b32 s93, {2*K1_AW}\ns_mov_b32 s94, 0\ns_mov_b32 s96, 0\ns_mov_b32 s95, {K1_AW}')
    a(f'''v_mov_b32 v50, v8
v_mov_b32 v51, v9
v_mov_b32 v52, v10
v_mov_b32 v53, v11
v_mov_b32 v54, v12
v_mov_b32 v55, v13
s_waitcnt vmcnt({7 + NSW}) lgkmcnt(0)
s_barrier
s_mov_b32 s69, 0
s_cmp_eq_u32 s66, 1
s_cbranch_scc1 k1_c1''')
    for c in range(2):
        if c == 1: a.label('k1_c1')
        stamp(a, 1, 56)
        if os.environ.get('PRIO1') == str(c): a('s_setprio 1')
        for t in k1_reads(0, c, 0): a(t)
        V = 7 if MWT else 6
        k1_step(a, c, True, True, True, False, 16 + NPF0 + NSW, first=True)
        sst(a, 2)
        a.label(f'k1_loop{c}')
        k1_step(a, c, True, True, True, False, V)
        for q, k in ((3, 3), (7, 4)):
            if STEPST:
                a(f's_cmp_lg_u32 s69, {q}\ns_cbranch_scc1 k1_ss{c}{q}'); sst(a, k); a.label(f'k1_ss{c}{q}')
        a(f's_add_u32 s69, s69, 1\ns_cmp_lt_u32 s69, 12\ns_cbranch_scc1 k1_loop{c}')
        ex = k1_extra(); n3 = (len(ex) + 2)//3
        sst(a, 5)
        k1_step(a, c, True, False, True, False, V, ex=ex[:n3])
        k1_step(a, c, False, False, False, False, 0, ex=ex[n3:2*n3], mw=True, ho=True)
        sst(a, 6)
        k1_last(a, c, ex[2*n3:])
        sst(a, 7)
        k1_epi(a, c)

SIGE = not os.environ.get('SIGL')
def sigf(a, c):
    W = ('s_waitcnt vmcnt(0)' if c else 's_cmp_eq_u32 s64, 0\ns_cbranch_scc1 k1_w1\ns_waitcnt vmcnt(0)\nk1_w1:\ns_waitcnt vmcnt(1)') if SIGE else f's_cmp_eq_u32 s82, 1\ns_cbranch_scc1 k1_w18{c}\ns_waitcnt vmcnt(6)\nk1_w18{c}:\ns_waitcnt vmcnt(14)'
    stamp(a, 4, 56)
    a(f'''v_mov_b32 v44, {K1_CNT}
v_mov_b32 v45, 1
s_mov_b64 exec, 1
{W}
ds_add_rtn_u32 v46, v44, v45
s_lshl_b32 s80, s67, 5
s_add_u32 s80, s80, s68
s_lshl_b32 s101, s80, 7
s_add_u32 s80, s101, {HF_OFF}
v_mov_b32 v44, 0
v_mov_b32 v45, s100
s_waitcnt lgkmcnt(0)
v_readfirstlane_b32 s81, v46
s_cmp_lg_u32 s81, 7
s_cbranch_scc1 k1_nosig{c}
{'buffer_wbl2 sc1' if WB else ''}
{'s_waitcnt vmcnt(0)' if WB else ''}
buffer_store_dword v45, v44, s[16:19], s80 offen {SC}''')
    a.label(f'k1_nosig{c}')
    a('s_mov_b64 exec, -1')
def k1_epi(a, c):
    RE = lambda t: ACC + (t >> 2)*4 + (t & 3)
    IM = lambda t: ACC + 16 + (t >> 2)*4 + (t & 3)
    stamp(a, 2, 56)
    import k2
    AG = 240
    def agl():
        a(f'buffer_load_dwordx4 v[{AG}:{AG+3}], v27, s[20:23], 0 offen {SC}\nbuffer_load_dwordx4 v[{AG+4}:{AG+7}], v252, s[20:23], 0 offen {SC}')
    def hfl(): a(f'buffer_load_dword v31, v30, s[16:19], s70 offen {SC}')
    def hfc(): a('v_xor_b32 v31, s100, v31\nv_and_b32 v31, v31, v43\nv_cmp_ne_u32 vcc, 0, v31\ns_nop 3')
    def agc():
        a(f'''v_xor_b32 v44, s100, v{AG+2}
v_xor_b32 v45, s100, v{AG+6}
v_and_b32 v44, v44, v253
v_and_or_b32 v44, v45, v254, v44
v_cmp_ne_u32 vcc, 0, v44
s_nop 3''')
    def polls(): agl(); hfl()
    a(f'''v_lshlrev_b32 v46, 3, v0
s_lshl_b32 s84, s64, 9
s_add_u32 s84, s84, {K1_ESC - 4096}
v_add_u32 v46, s84, v46
v_mov_b32 v36, 0
v_mov_b32 v37, 0
ds_write_b64 v46, v[36:37]''')
    for t in range(1, 16):
        a(f'''v_fmac_f32 v{RE(t)}, v14, v{RE(t-1)}
v_fmac_f32 v{IM(t)}, v14, v{IM(t-1)}
v_fma_f32 v{RE(t)}, -v15, v{IM(t-1)}, v{RE(t)}
v_fmac_f32 v{IM(t)}, v15, v{RE(t-1)}''')
    a(f'''v_lshlrev_b32 v46, 8, v26
v_lshl_add_u32 v46, v32, 3, v46
v_mov_b32 v36, v{RE(15)}
v_mov_b32 v37, v{IM(15)}
v_add_u32 v38, {K1_ESC + 128*c - 3840}, v46
v_add_u32 v46, {K1_ESC + 128*c}, v46
ds_write_b64 v46, v[36:37]
s_waitcnt vmcnt(12)''')
    a.label(f'k1_np{c}')
    a(f'''v_readfirstlane_b32 s100, v48
s_cmp_lg_u32 s100, 0
s_cbranch_scc1 k1_nq{c}
s_sleep 4
buffer_load_dword v48, v33, s[28:31], 0 offen {SC}
s_waitcnt vmcnt(0)
s_branch k1_np{c}''')
    a.label(f'k1_nq{c}')
    a(f'''s_waitcnt lgkmcnt(0)
s_barrier''')
    if c == 0:
        a(f'''s_cmp_lg_u32 s64, 0
s_cbranch_scc1 k1_nopub
v_and_b32 v47, 31, v0
v_lshlrev_b32 v47, 3, v47
v_add_u32 v46, {K1_ESC}, v47''')
        for s in range(16): a(f'ds_read_b64 v[{160+2*s}:{161+2*s}], v46 offset:{256*s}')
        a('v_lshlrev_b32 v47, 1, v47\nv_mov_b32 v192, s100\nv_mov_b32 v193, s100\ns_waitcnt lgkmcnt(0)')
        for s in range(1, 16):
            p = 160+2*(s-1); q = 160+2*s
            a(f'''v_fmac_f32 v{q}, v24, v{p}
v_fmac_f32 v{q+1}, v24, v{p+1}
v_fma_f32 v{q}, -v25, v{p+1}, v{q}
v_fmac_f32 v{q+1}, v25, v{p}''')
        a(f'''s_lshl_b32 s80, s67, 14
s_lshl_b32 s81, s68, 9
s_add_u32 s80, s80, s81
s_mov_b64 exec, 0xffffffff
buffer_store_dwordx4 v[190:193], v47, s[20:23], s80 offen {SC}
s_mov_b64 exec, -1''')
        a.label('k1_nopub')
    stamp(a, 3, 56)
    for s in range(15): a(f'ds_read_b64 v[{160+2*s}:{161+2*s}], v38 offset:{256*s}')
    if SIGE:
        sigf(a, c)
    k2.early(a)
    if not SIGE: a('s_waitcnt vmcnt(14)')
    agc()
    a('s_cmp_eq_u64 vcc, 0\ns_cselect_b32 s77, 1, 0\ns_mov_b32 s82, 0')
    hfc()
    a(f's_cbranch_vccnz k1_slow{c}\ns_mov_b32 s82, 1')
    k2.early_a(a, [0, 1])
    a.label(f'k1_slow{c}')
    if not SIGE: sigf(a, c)
    k1_mwb(a)
    a(f's_cmp_eq_u32 s77, 1\ns_cbranch_scc1 k1_ag1{c}')
    agl()
    a.label(f'k1_ag1{c}')
    for s in range(1, 15):
        q = 160+2*s; p = q-2
        a(f'''v_fmac_f32 v{q}, v16, v{p}
v_fmac_f32 v{q+1}, v16, v{p+1}
v_fma_f32 v{q}, -v17, v{p+1}, v{q}
v_fmac_f32 v{q+1}, v17, v{p}''')
    a('v_mov_b32 v28, v188\nv_mov_b32 v29, v189')
    for t in range(16):
        a(f'''v_mul_f32 v44, v22, v{RE(t)}
v_mul_f32 v45, v23, v{RE(t)}
v_fma_f32 v{RE(t)}, -v23, v{IM(t)}, v44
v_fma_f32 v{IM(t)}, -v22, v{IM(t)}, -v45''')
    a(f's_cmp_eq_u32 s82, 1\ns_cbranch_scc1 k1_hf1{c}')
    hfl()
    a.label(f'k1_hf1{c}')
    a('v_mov_b32 v160, v14\nv_mov_b32 v161, v15')
    for t in range(1, 16):
        q = 160+2*t; p = q-2
        a(f'''v_mul_f32 v{q}, v14, v{p}
v_mul_f32 v{q+1}, v14, v{p+1}
v_fma_f32 v{q}, -v15, v{p+1}, v{q}
v_fmac_f32 v{q+1}, v15, v{p}''')
    k2.bases(a)
    stamp(a, 5, 56)
    a(f'''s_mul_i32 s83, s67, 88
s_and_b32 s84, s68, 30
s_add_u32 s83, s83, s84
s_lshl_b32 s83, s83, 15
s_lshl_b32 s84, s65, 13
s_add_u32 s83, s83, s84
s_lshl_b32 s84, s88, 10
s_add_u32 s83, s83, s84
s_add_u32 s84, s83, 32768
v_lshrrev_b32 v33, 4, v0
v_and_b32 v45, 1, v33
v_lshlrev_b32 v45, 2, v45
v_lshrrev_b32 v46, 1, v33
v_lshl_or_b32 v45, v46, 4, v45
v_add_u32 v46, {16*c}, v32
v_xor_b32 v45, v45, v46
v_lshl_add_u32 v45, v33, 5, v45
v_lshlrev_b32 v39, 3, v45
v_add_u32 v40, 4096, v39''')
    a(f's_cmp_eq_u32 s82, 1\ns_cbranch_scc1 k1_fast{c}')
    a.label(f'k1_hp{c}')
    a('s_waitcnt vmcnt(0)')
    hfc()
    a(f's_cbranch_vccz k1_hq{c}\ns_sleep {os.environ.get("SLP", "1")}')
    hfl()
    a(f's_branch k1_hp{c}')
    a.label(f'k1_hq{c}')
    stamp(a, 6, 56)
    k2.early_a(a, [0])
    a(f's_cmp_eq_u32 s77, 1\ns_cbranch_scc1 k1_adone{c}\ns_branch k1_agc{c}')
    a.label(f'k1_fast{c}')
    stamp(a, 6, 56)
    a(f's_cmp_eq_u32 s77, 1\ns_cbranch_scc1 k1_adone{c}')
    a.label(f'k1_agw{c}')
    a('s_waitcnt vmcnt(0)')
    a.label(f'k1_agc{c}')
    agc()
    a(f's_cbranch_vccz k1_adone{c}\ns_sleep 1')
    agl()
    a(f's_branch k1_agw{c}')
    a.label(f'k1_adone{c}')
    stamp(a, 7, 56)
    a(f'''v_mul_f32 v248, v18, v{AG}
v_mul_f32 v249, v18, v{AG+1}
v_fma_f32 v248, -v19, v{AG+1}, v248
v_fmac_f32 v249, v19, v{AG}
v_fmac_f32 v248, v34, v{AG+4}
v_fmac_f32 v249, v34, v{AG+5}
v_fma_f32 v248, -v35, v{AG+5}, v248
v_fmac_f32 v249, v35, v{AG+4}
v_mov_b32 v250, v248
v_mov_b32 v251, v249
v_permlane32_swap_b32 v248, v250
v_permlane32_swap_b32 v249, v251
v_add_f32 v248, v248, v250
v_add_f32 v249, v249, v251
v_mov_b32 v250, v248
v_mov_b32 v251, v249
v_permlane16_swap_b32 v248, v250
v_permlane16_swap_b32 v249, v251
v_add_f32 v248, v248, v250
v_add_f32 v249, v249, v251''')
    a('''v_fmac_f32 v28, v20, v248
v_fmac_f32 v29, v20, v249
v_fma_f32 v28, -v21, v249, v28
v_fmac_f32 v29, v21, v248
v_mul_f32 v46, v22, v28
v_mul_f32 v47, v22, v29
v_fma_f32 v46, -v23, v29, v46
v_fmac_f32 v47, v23, v28''')
    for b in range(4):
        for e in range(4):
            t = 4*b + e; q = 160+2*t
            a(f'''v_fmac_f32 v{RE(t)}, v{q}, v46
v_fma_f32 v{IM(t)}, -v{q}, v47, v{IM(t)}
v_fma_f32 v{RE(t)}, -v{q+1}, v47, v{RE(t)}
v_fma_f32 v{IM(t)}, -v{q+1}, v46, v{IM(t)}''')
    a('s_cmp_eq_u32 s82, 1\ns_cbranch_scc1 k2_start')
    k2.early_a(a, [1])
    if c == 0: a('s_branch k2_start')

def hstores():
    RE = lambda t: ACC + t
    IM = lambda t: ACC + 16 + t
    out = []
    for b in range(4):
        t = 224 + 4*b
        out.append(f'''v_cvt_pk_bf16_f32 v{t}, v{RE(4*b)}, v{RE(4*b+1)}
v_cvt_pk_bf16_f32 v{t+1}, v{RE(4*b+2)}, v{RE(4*b+3)}
buffer_store_dwordx2 v[{t}:{t+1}], v{39 + (b >> 1)}, s[16:19], s83 offen offset:{2048*(b & 1)}{WT}''')
        out.append(f'''v_cvt_pk_bf16_f32 v{t+2}, v{IM(4*b)}, v{IM(4*b+1)}
v_cvt_pk_bf16_f32 v{t+3}, v{IM(4*b+2)}, v{IM(4*b+3)}
buffer_store_dwordx2 v[{t+2}:{t+3}], v{39 + (b >> 1)}, s[16:19], s84 offen offset:{2048*(b & 1)}{WT}''')
    return out
```

```python
from asmlib import *
from k1 import ROT, HF_OFF, HD_OFF, srd, A2_SIZE, G_OFF, X_OFF, WS_SIZE, FLAG_OFF, SC
K2_STAGE = 49152; K2_LDS = 3*K2_STAGE
ACCA = 32; ACCB = 96; SET = [160, 192]
def frag(st, kind, n): return SET[st] + (0 if kind == 'A' else 16) + 4*n
def mfmas(st, ty):
    acc = ACCA if ty == 'a' else ACCB
    out = []
    for nb in range(4):
        for b in range(4):
            d = acc + (b*4 + nb)*4
            A = frag(st, 'A', b); B = frag(st, 'B', nb)
            out.append(f'v_mfma_f32_16x16x32_bf16 v[{d}:{d+3}], v[{B}:{B+3}], v[{A}:{A+3}], v[{d}:{d+3}]')
    return out
def reads(st, ty, kf):
    out = []
    if ty == 'a':
        def rA(b):
            f = frag(st, 'A', b)
            return [f'ds_read_b64_tr_b16 v[{f+2*h}:{f+2*h+1}], v{16+h} offset:{b*2048 + kf*1024}' for h in range(2)]
        def rB(n):
            f = frag(st, 'B', n); return [f'ds_read_b128 v[{f}:{f+3}], v{18+kf} offset:{n*2048}']
    else:
        def rA(b):
            f = frag(st, 'A', b); return [f'ds_read_b128 v[{f}:{f+3}], v16 offset:{b*2048 + kf*1024}']
        def rB(n):
            f = frag(st, 'B', n)
            return [f'ds_read_b64_tr_b16 v[{f+2*h}:{f+2*h+1}], v{17+n} offset:{(32*kf + 16*h)*256}' for h in range(2)]
    return rB(0) + rA(0) + rA(1) + rA(2) + rA(3) + rB(1) + rB(2) + rB(3)
def addr_update(ty, sreg):
    if ty == 'a': return [f'v_add_u32 v{16+k}, s{sreg}, v{7+k}' for k in range(4)]
    return [f'v_add_u32 v{16+k}, s{sreg}, v{11+k}' for k in range(5)]
P0 = float(os.environ.get('P0', 0.3)); P1 = float(os.environ.get('P1', 0.8))
ASC = os.environ.get('ASC', 'sc1')
def dma_setup(kind):
    if kind == 'b':
        return ['s_lshl_b32 s74, s71, 17\ns_add_u32 s74, s74, s79\ns_lshl_b32 s73, s71, 15\ns_add_u32 s73, s73, s90',
                's_add_u32 s71, s71, 1\ns_cmp_eq_u32 s71, 14\ns_cselect_b32 s71, 0, s71']
    out = []
    if kind == 's':
        out.append('''s_mul_i32 s73, s67, 88
s_lshl_b32 s80, s69, 3
s_add_u32 s73, s73, s80
s_lshl_b32 s73, s73, 15
s_mov_b32 s10, 2097152
v_mov_b32 v3, v5
v_mov_b32 v4, v6''')
    out += ['''s_bitcmp1_b32 s72, 0
s_cselect_b64 s[8:9], s[44:45], s[42:43]
s_lshr_b32 s80, s72, 1
s_lshl_b32 s80, s80, 7
s_add_u32 s74, s80, s97''']
    return out
def dma(sslot):
    out = []
    for p in range(2):
        out.append(f's_add_u32 m0, s{sslot}, s{93+p}\ns_nop 0\nbuffer_load_dwordx4 v{1+p}, s[4:7], s73 offen {ASC} lds')
        out.append(f'buffer_load_dwordx4 v{1+p}, s[4:7], s73 offen offset:1024 {ASC} lds')
    for p in range(2):
        out.append(f's_add_u32 m0, s{sslot}, s{95+p}\ns_nop 0\nbuffer_load_dwordx4 v{3+p}, s[8:11], s74 offen lds')
    out[-1] += '\ns_add_u32 s72, s72, 1\ns_add_u32 s73, s73, 32768'
    return out
from k1 import place, hstores, weave
def step(a, cur, nxt, kind, vm='s_waitcnt vmcnt(6) lgkmcnt(0)', first=False, nod0=False, post='', fill1='', d0=True, d1=True, bar=True, ex=[]):
    dm = dma(77)
    if EXP == 'nodma': dm = ['s_nop 0']*6
    a('s_waitcnt lgkmcnt(0)')
    m0 = mfmas(0, cur)
    if first: m0 = [re.sub(r', v\[\d+:\d+\]$', ', 0', m) for m in m0]
    for t in weave(place(m0, reads(1, cur, 1), adma(2) + hstores() if nod0 else dm[3:] if d0 else [], P0), ex[:len(ex)//2]): a(t)
    a(vm)
    if bar: a('s_barrier')
    if nxt is None:
        m = mfmas(1, cur)
        for b in [1, 2, 3, 0]:
            for nb in range(4): a(m[nb*4 + b])
        return
    for t in addr_update(nxt, 76): a(t)
    if post: a(post)
    rd = reads(0, nxt, 0)
    su = dma_setup(kind) if d1 else []
    rd[0] += f'\ns_mov_b32 s77, s75\ns_mov_b32 s75, s76\ns_add_u32 s76, s76, {K2_STAGE}\ns_cmp_lt_u32 s76, {K2_LDS}\ns_cselect_b32 s76, s76, 0\ns_add_u32 s70, s70, 1'
    for k, t in enumerate(su): rd[1+k] += '\n' + t
    for k, t in enumerate(fill1): rd[min(k, len(rd)-1)] += '\n' + t
    for t in weave(place(mfmas(1, cur), rd, dm[:3] if d1 else [], P1), ex[len(ex)//2:]): a(t)

def early(a):
    a(f'''s_mul_i32 s71, s78, 112
s_add_u32 s71, s71, 175
s_lshr_b32 s71, s71, 6
{'' if ROT else 's_mov_b32 s71, 0'}
s_cmp_eq_u32 s71, 14
s_cselect_b32 s85, 0, s71
s_add_u32 s86, s85, 1
s_cmp_eq_u32 s86, 14
s_cselect_b32 s86, 0, s86
s_add_u32 s87, s86, 1
s_cmp_eq_u32 s87, 14
s_cselect_b32 s87, 0, s87
s_add_u32 s71, s87, 1
s_cmp_eq_u32 s71, 14
s_cselect_b32 s71, 0, s71
s_mul_i32 s79, s69, {14 << 17}
s_lshl_b32 s97, s69, 9
s_sub_u32 s97, s97, 896
v_lshrrev_b32 v7, 3, v0
v_and_b32 v8, 7, v0
v_and_b32 v9, 15, v0
v_lshrrev_b32 v10, 4, v0
s_lshl_b32 s80, s64, 3
v_add_u32 v12, s80, v10
v_lshlrev_b32 v12, 11, v12
s_lshl_b32 s80, s78, 8
v_add_u32 v12, s80, v12
v_lshlrev_b32 v13, 1, v10
v_xor_b32 v13, v13, v9
v_lshl_add_u32 v3, v13, 4, v12
v_xor_b32 v4, 128, v3
v_add_u32 v4, 0x2000, v4
s_lshl_b32 s93, s64, 12
s_add_u32 s94, s93, 2048
s_lshl_b32 s95, s64, 11
s_add_u32 s95, s95, 32768
s_add_u32 s96, s95, 1024''')
    srd(a, 8, 54, 7340032)
    srd(a, 4, 62, A2_SIZE)
    for st in range(3):
        for p in range(2):
            a(f's_lshl_b32 s74, s{85+st}, 17\ns_add_u32 m0, s{95+p}, {st*K2_STAGE}\ns_add_u32 s74, s74, s79\nbuffer_load_dwordx4 v{3+p}, s[8:11], s74 offen lds')
    a(f'''v_lshlrev_b32 v11, 4, v0
s_lshr_b32 s80, s64, 1
s_lshl_b32 s80, s80, 2
s_and_b32 s81, s64, 1
s_lshl_b32 s81, s81, 1
s_add_u32 s81, s81, s69
s_and_b32 s82, s81, 3
s_add_u32 s82, s82, s80
s_lshl_b32 s82, s82, 11
v_add_u32 v1, s82, v11
s_add_u32 s81, s81, 1
s_and_b32 s82, s81, 3
s_add_u32 s82, s82, s80
s_lshl_b32 s82, s82, 11
v_add_u32 v2, s82, v11
s_lshl_b32 s80, s78, 7
s_lshl_b32 s81, s64, 4
s_add_u32 s80, s80, s81
v_add_u32 v12, s80, v7
v_lshlrev_b32 v12, 11, v12
v_lshrrev_b32 v13, 1, v7
v_xor_b32 v13, v13, v8
v_lshl_add_u32 v5, v13, 4, v12
v_xor_b32 v6, 64, v5
v_add_u32 v6, 0x4000, v6
s_mul_i32 s73, s67, 88
s_mul_i32 s80, s69, 14
s_add_u32 s73, s73, s80
s_add_u32 s73, s73, 32
s_lshl_b32 s90, s73, 15
s_mov_b32 s72, 3
s_mov_b32 s75, 0
s_mov_b32 s76, {K2_STAGE}''')
def adma(st):
    out = []
    for p in range(2):
        out.append((f's_lshl_b32 s73, s{85+st}, 15\ns_add_u32 s73, s73, s90\n' if p == 0 else '') + f's_add_u32 m0, s{93+p}, {st*K2_STAGE}\ns_nop 0\nbuffer_load_dwordx4 v{1+p}, s[4:7], s73 offen {ASC} lds')
        out.append(f'buffer_load_dwordx4 v{1+p}, s[4:7], s73 offen offset:1024 {ASC} lds')
    return out
def early_a(a, sts):
    for st in sts:
        for t in adma(st): a(t)

def pre_epi(a):
    srd(a, 12, 62, WS_SIZE)
    srd(a, 16, 32, 4194304)
    srd(a, 20, 48, 2048)
    a(f'''v_lshrrev_b32 v26, 2, v23
v_lshlrev_b32 v26, 4, v26
v_and_b32 v27, 3, v23
s_lshl_b32 s80, s67, 8
s_lshl_b32 s81, s65, 6
s_add_u32 s80, s80, s81
v_add3_u32 v26, v26, v27, s80
v_lshlrev_b32 v27, 2, v26''')
    for b in range(4):
        a(f'''s_add_u32 s81, s69, {b}
s_and_b32 s81, s81, 3
s_lshl_b32 s81, s81, 4
s_add_u32 s81, s81, {G_OFF}
buffer_load_dword v{224+b}, v27, s[12:15], s81 offen {SC}''')
    a(f'''s_lshl_b32 s81, s69, 2
v_add_u32 v26, s81, v26
s_lshl_b32 s80, s78, 7
s_lshl_b32 s81, s66, 6
s_add_u32 s80, s80, s81
v_lshl_add_u32 v27, v24, 2, s80
v_lshlrev_b32 v28, 1, v27
v_lshl_add_u32 v29, v26, 11, v28
v_lshlrev_b32 v31, 2, v27
v_lshl_add_u32 v31, v26, 12, v31''')
    for nb in range(4):
        a(f'buffer_load_dwordx2 v[{228+2*nb}:{229+2*nb}], v29, s[16:19], 0 offen offset:{32*nb}')
        a(f'buffer_load_dwordx2 v[{236+2*nb}:{237+2*nb}], v28, s[20:23], 0 offen offset:{32*nb}')

def bases(a):
    a('v_and_b32 v50, 15, v0\nv_lshrrev_b32 v51, 4, v0\nv_lshlrev_b32 v52, 4, v0')
    a(f'''; a-type bases: hA: rr=(l>>2)&3, cq=l&3, ch=8G+rr(+4h) ; unit = 32cq + (ch ^ (4(cq&1)+16(cq>>1)))
v_bfe_u32 v53, v0, 2, 2
v_and_b32 v54, 3, v0
v_lshl_add_u32 v55, v51, 3, v53
v_and_b32 v46, 1, v54
v_lshlrev_b32 v46, 2, v46
v_lshrrev_b32 v47, 1, v54
v_lshl_or_b32 v46, v47, 4, v46
v_xor_b32 v55, v55, v46
v_lshl_add_u32 v55, v54, 5, v55
v_lshlrev_b32 v55, 3, v55
s_lshl_b32 s80, s65, 13
v_add_u32 v7, s80, v55
v_xor_b32 v8, 32, v7
v_add_u32 v11, s80, v52
v_lshrrev_b32 v55, 1, v50
v_xor_b32 v55, v55, v51
v_lshlrev_b32 v55, 4, v55
v_lshl_add_u32 v55, v50, 7, v55
s_lshl_b32 s80, s66, 13
s_add_u32 s80, s80, 32768
v_add_u32 v9, s80, v55
v_xor_b32 v10, 64, v9
v_lshl_add_u32 v55, v51, 2, v53
v_and_b32 v46, 7, v55
v_lshlrev_b32 v46, 1, v46
s_lshl_b32 s80, s66, 3
v_add_u32 v47, s80, v47
v_xor_b32 v46, v46, v47
v_lshlrev_b32 v46, 4, v46
v_lshl_add_u32 v46, v55, 8, v46
v_and_b32 v47, 1, v54
v_lshl_add_u32 v46, v47, 3, v46
v_add_u32 v12, 32768, v46
v_xor_b32 v13, 32, v12
v_xor_b32 v14, 64, v12
v_xor_b32 v15, 96, v12''')

def gen_k2(a):
    a.label('k2_start')
    if os.environ.get('PRIO2'): a('s_cmp_eq_u32 s66, 1\ns_cbranch_scc1 k2_np\ns_setprio 1\nk2_np:')
    a('''s_mov_b32 s70, 0
v_and_b32 v23, 15, v0
v_lshrrev_b32 v24, 4, v0
v_lshlrev_b32 v25, 4, v0''')
    stamp(a, 0, 244)
    stamp_flush(a, 56, 0, 16, 64, mid=True)
    for t in addr_update('b', 75): a(t)
    a('''s_waitcnt vmcnt(4)
s_barrier''')
    stamp(a, 1, 244)
    for t in reads(0, 'b', 0): a(t)
    step(a, 'b', 'b', 'b', vm='s_waitcnt vmcnt(12) lgkmcnt(0)', first=True, nod0=True)
    step(a, 'b', 'b', 'b', vm='s_waitcnt vmcnt(14) lgkmcnt(0)')
    step(a, 'b', 'b', 'b', post=f'''s_cmp_lg_u32 s64, 0
s_cbranch_scc1 k2_nf
s_add_u32 s80, s101, {HD_OFF}
v_mov_b32 v21, 0
v_mov_b32 v22, s100
s_mov_b64 exec, 1
buffer_store_dword v22, v21, s[16:19], s80 offen {SC}
s_mov_b64 exec, -1
k2_nf:''')
    step(a, 'b', 'b', 'b', vm='''s_cmp_eq_u32 s64, 0
s_cbranch_scc1 k2_w7
s_waitcnt vmcnt(6)
k2_w7:
s_waitcnt vmcnt(7) lgkmcnt(0)''')
    a.label('k2_lb')
    step(a, 'b', 'b', 'b')
    a('s_cmp_lt_u32 s70, 10\ns_cbranch_scc1 k2_lb')
    step(a, 'b', 'b', 'b', post=f'''v_and_b32 v21, 31, v0
v_lshlrev_b32 v21, 7, v21
s_lshl_b32 s91, s67, 12
s_add_u32 s91, s91, {HD_OFF}
buffer_load_dword v22, v21, s[16:19], s91 offen {SC}''')
    step(a, 'b', 'b', 's', post=f'''k2_hp:
v_cmp_ne_u32 vcc, s100, v22
s_nop 3
s_cbranch_vccz k2_hq
s_sleep 2
buffer_load_dword v22, v21, s[16:19], s91 offen {SC}
s_waitcnt vmcnt(0)
s_branch k2_hp
k2_hq:''')
    L = []
    pre_epi(lambda t: L.append(t))
    step(a, 'b', 'b', 'a', post='\n'.join(L))
    step(a, 'b', 'a', 'a', vm='s_waitcnt vmcnt(18) lgkmcnt(0)')
    step(a, 'a', 'a', 'a', first=True)
    a.label('k2_la')
    step(a, 'a', 'a', 'a')
    a('s_cmp_lt_u32 s70, 19\ns_cbranch_scc1 k2_la')
    ex = []
    for b in range(4): ex += [f'v_sub_f32 v{26+b}, 1.0, v{224+b}', f'v_cvt_pk_bf16_f32 v{26+b}, v{26+b}, v{26+b}', f'v_lshlrev_b32 v{26+b}, 16, v{26+b}']
    for b in range(4): ex += [f'v_mul_f32 v{ACCB+16*b+k}, v{ACCB+16*b+k}, v{26+b}' for k in range(16)]
    step(a, 'a', 'a', 'a', vm='s_waitcnt vmcnt(6) lgkmcnt(0)', d1=False, ex=ex[:28])
    step(a, 'a', 'a', 'a', vm='s_waitcnt vmcnt(0) lgkmcnt(0)', d0=False, d1=False, ex=ex[28:])
    step(a, 'a', None, 'a', vm='s_waitcnt lgkmcnt(0)', d0=False, d1=False, bar=False)
    a.label('k2_epi')
    stamp(a, 2, 244)
    srd(a, 24, 58, 8388608)
    a(f'''s_lshl_b32 s80, s67, 3
s_add_u32 s88, s80, s78
s_lshl_b32 s80, s88, 18
s_add_u32 s80, s80, {X_OFF}
s_lshl_b32 s81, s64, 11
s_add_u32 s89, s80, s81
s_lshl_b32 s81, s69, 14
s_add_u32 s90, s89, s81
v_lshlrev_b32 v25, 4, v0
s_waitcnt lgkmcnt(0)''')
    for b in [1, 2, 3, 0]:
        for k in range(16):
            a(f'v_fma_f32 v{ACCA+16*b+k}, v{ACCA+16*b+k}, v{224+b}, v{ACCB+16*b+k}')
        if b:
            a(f's_add_u32 s81, s69, {b}\ns_and_b32 s81, s81, 3\ns_lshl_b32 s81, s81, 16\ns_add_u32 s81, s81, s90')
            t = 168 + 8*(b-1)
            for k in range(8): a(f'v_cvt_pk_bf16_f32 v{t+k}, v{ACCA+16*b+2*k}, v{ACCA+16*b+2*k+1}')
            for h in range(2):
                a(f'buffer_store_dwordx4 v[{t+4*h}:{t+4*h+3}], v25, s[12:15], s81 offen offset:{1024*h} {SC}')
    stamp(a, 3, 244)
    for nb in range(4):
        for h in range(2):
            x = 228+2*nb+h; dd = 236+2*nb+h; o = ACCA + 4*nb + 2*h
            a(f'''v_lshlrev_b32 v192, 16, v{x}
v_and_b32 v193, 0xffff0000, v{x}
v_lshlrev_b32 v194, 16, v{dd}
v_and_b32 v195, 0xffff0000, v{dd}
v_mul_f32 v192, v192, v194
v_mul_f32 v193, v193, v195
v_cvt_pk_bf16_f32 v192, v192, v193
v_lshlrev_b32 v193, 16, v192
v_and_b32 v192, 0xffff0000, v192
v_fmac_f32 v{o}, v193, v224
v_fmac_f32 v{o+1}, v192, v224''')
    a(f'''s_lshl_b32 s80, s88, 12
s_lshl_b32 s81, s64, 7
s_add_u32 s80, s80, s81
s_add_u32 s80, s80, {FLAG_OFF}
s_lshl_b32 s81, s69, 10
s_add_u32 s81, s81, s80
v_mov_b32 v192, 0
v_mov_b32 v193, s100
v_and_b32 v194, 3, v0
v_lshlrev_b32 v194, 10, v194
s_lshl_b32 s86, 1, s69
s_xor_b32 s86, s86, 15
s_mov_b32 s87, 0
s_mov_b64 exec, s[86:87]
buffer_load_dword v195, v194, s[12:15], s80 offen {SC}
s_waitcnt vmcnt(1)''')
    stamp(a, 4, 244)
    a(f'''s_mov_b64 exec, 1
buffer_store_dword v193, v192, s[12:15], s81 offen {SC}
s_mov_b64 exec, s[86:87]
s_lshl_b32 s81, s69, 16
s_add_u32 s89, s89, s81
s_waitcnt vmcnt(1)''')
    a.label('k2_poll')
    a(f'''v_cmp_ne_u32 vcc, s100, v195
s_nop 3
s_cbranch_vccz k2_nopoll
s_sleep 1
buffer_load_dword v195, v194, s[12:15], s80 offen {SC}
s_waitcnt vmcnt(0)
s_branch k2_poll''')
    a.label('k2_nopoll')
    a('s_mov_b64 exec, -1')
    stamp(a, 5, 244)
    for b in range(1, 4):
        a(f's_add_u32 s81, s69, {b}\ns_and_b32 s81, s81, 3\ns_lshl_b32 s81, s81, 14\ns_add_u32 s81, s81, s89')
        t = 168 + 8*(b-1)
        for h in range(2):
            a(f'buffer_load_dwordx4 v[{t+4*h}:{t+4*h+3}], v25, s[12:15], s81 offen offset:{1024*h} {SC}')
    a('s_waitcnt vmcnt(0)')
    stamp(a, 6, 244)
    for nb in range(4):
        for k in range(2*nb, 2*nb+2):
            for b in range(3):
                t = 168 + 8*b + k
                a(f'v_lshlrev_b32 v192, 16, v{t}\nv_and_b32 v193, 0xffff0000, v{t}\nv_add_f32 v{ACCA+2*k}, v{ACCA+2*k}, v192\nv_add_f32 v{ACCA+2*k+1}, v{ACCA+2*k+1}, v193')
        a(f'buffer_store_dwordx4 v[{ACCA+4*nb}:{ACCA+4*nb+3}], v31, s[24:27], 0 offen offset:{64*nb} {os.environ.get("OUTF", "nt")}')
    if STAMP: a('s_waitcnt vmcnt(0)')
    stamp_flush(a, 244, 1, 12, 64)
    a.label('k1_end')
    a('s_endpgm')
```
